```python
import torch

def _softmax(x, axis=-1):
    return torch.softmax(x, dim=axis)
def _gelu(x):
    return torch.nn.functional.gelu(x, approximate="tanh")
def _silu(x):
    return torch.nn.functional.silu(x)
def _sigmoid(x):
    return torch.sigmoid(x)
def _layernorm(x, axis=-1, eps=1e-5):
    m = x.mean(dim=axis, keepdim=True)
    v = x.var(dim=axis, keepdim=True, unbiased=False)
    return (x - m) / torch.sqrt(v + eps)
def _scatter_add(tgt, idx, src, axis=0):
    return tgt.clone().index_add_(axis, idx, src)
def _segment_sum(src, seg, n):
    out = torch.zeros((n,) + src.shape[1:], dtype=src.dtype)
    return out.index_add_(0, seg, src)
def _pad(x, pw):
    flat = tuple(v for pair in reversed(pw) for v in pair)
    return torch.nn.functional.pad(x, flat)

kernel_name = 'gated_mix__softmax_full_mha__mixer_channel_mlp__prompt'

def setup_inputs():

    _w = (lambda a: (lambda t: t.to(torch.bfloat16) if t.is_floating_point() else t)(torch.as_tensor(a)))
    def _A_setup():
        B, S, D = 1, 2048, 576
        return {
            "x": _w((lambda *s: torch.randn(*s, dtype=torch.bfloat16) * 0.05)(B, S, D)),
            "wqkv": _w((lambda *s: torch.randn(*s, dtype=torch.bfloat16) * 0.8)(D, 3 * D)),
            "wo": _w((lambda *s: torch.randn(*s, dtype=torch.bfloat16) * 0.1)(D, D)),
        }
    _A_in = _A_setup()

    def _B_setup():
        B, S, D, F = 1, 2048, 576, 4608
        return {
            "x": _w((lambda *s: torch.randn(*s, dtype=torch.bfloat16) * 0.05)(B, S, D)),
            "w1": _w((lambda *s: torch.randn(*s, dtype=torch.bfloat16) * 1.6)(D, F) * (D ** -0.5)),
            "b1": _w((lambda *s: torch.randn(*s, dtype=torch.bfloat16) * 0.8)(F)),
            "w2": _w((lambda *s: torch.randn(*s, dtype=torch.bfloat16) * 0.05)(F, D) * (F ** -0.5)),
            "b2": _w((lambda *s: torch.randn(*s, dtype=torch.bfloat16) * 0.05)(D)),
        }
    _B_in = _B_setup()

    return {
        "A_x": _A_in["x"],
        "A_wqkv": _A_in["wqkv"],
        "A_wo": _A_in["wo"],
        "B_x": _B_in["x"],
        "B_w1": _B_in["w1"],
        "B_b1": _B_in["b1"],
        "B_w2": _B_in["w2"],
        "B_b2": _B_in["b2"],
        "gate_w": _w((lambda *s: torch.randn(*s, dtype=torch.bfloat16) * 0.05)(576) * 16.0),
    }

def reference(A_x, A_wqkv, A_wo, B_x, B_w1, B_b1, B_w2, B_b2, gate_w):
    def _A_ref(x, wqkv, wo):
        B, S, D = x.shape
        H = 32; Dh = D // H
        qkv = (lambda x, *d: x.permute(*d))((x @ wqkv).reshape(B, S, 3, H, Dh), 2, 0, 3, 1, 4)
        q, k, v = qkv[0], qkv[1], qkv[2]
        scale = Dh ** -0.5
        scores = torch.einsum("bhqd,bhkd->bhqk", q, k) * scale
        p = _softmax(scores, axis=-1)
        o = torch.einsum("bhqk,bhkd->bhqd", p, v)
        return (lambda x, *d: x.permute(*d))(o, 0, 2, 1, 3).reshape(B, S, D) @ wo

    def _B_ref(x, w1, b1, w2, b2):
        y = _layernorm(x, axis=-1)
        h = _gelu(torch.einsum("bsd,df->bsf", y, w1) + b1)
        return torch.einsum("bsf,fd->bsd", h, w2) + b2

    x = A_x
    g = _sigmoid((x * gate_w).sum(-1, keepdims=True))
    a = _A_ref(x, A_wqkv, A_wo)
    b = _B_ref(x, B_w1, B_b1, B_w2, B_b2)
    return g * a + (1 - g) * b
```

```python
import sys, struct
import wsmap as W

def f32(x):
    return "0x%08x" % struct.unpack("<I", struct.pack("<f", x))[0]

class Asm:
    def __init__(self):
        self.lines = []
        self.late = []
    def __call__(self, s):
        for l in s.strip("\n").split("\n"):
            self.lines.append("    " + l.strip())
    def label(self, l):
        self.lines.append(l + ":")
    def text(self):
        return "\n".join(self.lines) + "\n"

KA = dict(x=0, wqkv=8, wo=16, w1=32, b1=40, w2=48, b2=56, gw=64, out=72, dbg=80, ws=88)
SZ = dict(x=2048*576*2, wqkv=576*1728*2, wo=576*576*2, w1=576*4608*2, b1=4608*2, w2=4608*576*2, b2=576*2, gw=576*2, out=2048*576*2)

def srd_load(a, s, name):
    a(f"s_load_dwordx2 s[{s}:{s+1}], s[0:1], {KA[name]}")

def srd_fin(a, s, size, off=0):
    if off:
        a(f"s_add_u32 s{s}, s{s}, {off:#x}")
        a(f"s_addc_u32 s{s+1}, s{s+1}, 0")
    a(f"s_mov_b32 s{s+2}, {size:#x}")
    a(f"s_mov_b32 s{s+3}, 0x20000")

def kernel_header(name):
    return f""".globl {name}
.p2align 8
.type {name},@function
{name}:
"""

def kernel_desc(name, vgpr, sgpr=102):
    ag = 0
    if isinstance(vgpr, tuple):
        vgpr, ag = vgpr
    acc = (vgpr + 3) // 4 * 4
    if ag:
        vgpr = acc + ag
    return f""".p2align 6
.amdhsa_kernel {name}
  .amdhsa_next_free_vgpr {vgpr}
  .amdhsa_next_free_sgpr {sgpr}
  .amdhsa_accum_offset {acc}
  .amdhsa_group_segment_fixed_size 0
  .amdhsa_kernarg_size 96
  .amdhsa_user_sgpr_count 2
  .amdhsa_user_sgpr_kernarg_segment_ptr 1
  .amdhsa_system_sgpr_workgroup_id_x 1
.end_amdhsa_kernel
"""

def gen_pre():
    a = Asm()
    a("s_cmp_ge_u32 s2, 256")
    a("s_cbranch_scc1 pre_done")
    srd_load(a, 4, "x"); srd_load(a, 8, "gw"); srd_load(a, 12, "ws"); srd_load(a, 16, "ws")
    a("v_lshrrev_b32 v1, 3, v0")
    a("v_and_b32 v2, 7, v0")
    a("s_lshl_b32 s3, s2, 3")
    a("v_add_u32 v1, s3, v1")
    a("v_mul_u32_u24 v3, 1152, v1")
    a("v_lshlrev_b32 v2, 4, v2")
    a("v_add_u32 v3, v3, v2")
    a("s_waitcnt lgkmcnt(0)")
    srd_fin(a, 4, SZ["x"]); srd_fin(a, 8, SZ["gw"])
    srd_fin(a, 12, 2048*576*2, W.Y); srd_fin(a, 16, 2048*4, W.G)
    X = 8
    Gw = 44
    F = 80
    for i in range(9):
        a(f"buffer_load_dwordx4 v[{X+4*i}:{X+4*i+3}], v3, s[4:7], 0 offen offset:{i*128}")
    for i in range(9):
        a(f"buffer_load_dwordx4 v[{Gw+4*i}:{Gw+4*i+3}], v2, s[8:11], 0 offen offset:{i*128}")
    a("s_waitcnt vmcnt(9)")
    for i in range(36):
        a(f"v_lshlrev_b32 v{F+2*i}, 16, v{X+i}")
        a(f"v_and_b32 v{F+2*i+1}, 0xffff0000, v{X+i}")
    a(f"v_add_f32 v4, v{F}, v{F+1}")
    a(f"v_add_f32 v5, v{F+2}, v{F+3}")
    for i in range(4, 72, 2):
        a(f"v_add_f32 v4, v4, v{F+i}")
        a(f"v_add_f32 v5, v5, v{F+i+1}")
    a("v_add_f32 v4, v4, v5")
    def red8(r):
        a("s_nop 1")
        a(f"v_add_f32_dpp v{r}, v{r}, v{r} quad_perm:[1,0,3,2] row_mask:0xf bank_mask:0xf")
        a("s_nop 1")
        a(f"v_add_f32_dpp v{r}, v{r}, v{r} quad_perm:[2,3,0,1] row_mask:0xf bank_mask:0xf")
        a("s_nop 1")
        a(f"v_add_f32_dpp v{r}, v{r}, v{r} row_half_mirror row_mask:0xf bank_mask:0xf")
    red8(4)
    a(f"v_mul_f32 v4, {f32(1.0/576)}, v4")
    a("s_waitcnt vmcnt(0)")
    a("v_mov_b32 v5, 0")
    a("v_mov_b32 v6, 0")
    a("v_mov_b32 v7, 0")
    a("v_mov_b32 v152, 0")
    for i in range(36):
        a(f"v_lshlrev_b32 v153, 16, v{Gw+i}")
        a(f"v_and_b32 v154, 0xffff0000, v{Gw+i}")
        a(f"v_fmac_f32 v5, v{F+2*i}, v153")
        a(f"v_fmac_f32 v6, v{F+2*i+1}, v154")
        a(f"v_sub_f32 v{F+2*i}, v{F+2*i}, v4")
        a(f"v_sub_f32 v{F+2*i+1}, v{F+2*i+1}, v4")
        a(f"v_fmac_f32 v7, v{F+2*i}, v{F+2*i}")
        a(f"v_fmac_f32 v152, v{F+2*i+1}, v{F+2*i+1}")
    a("v_add_f32 v5, v5, v6")
    a("v_add_f32 v7, v7, v152")
    red8(5); red8(7)
    a(f"v_mov_b32 v6, {f32(1e-5)}")
    a(f"v_fmac_f32 v6, {f32(1.0/576)}, v7")
    a("v_rsq_f32 v6, v6")
    a(f"v_mul_f32 v5, {f32(-1.4426950408889634)}, v5")
    a("v_exp_f32 v5, v5")
    a("s_nop 0")
    a("v_add_f32 v5, 1.0, v5")
    a("v_rcp_f32 v5, v5")
    for i in range(72):
        a(f"v_mul_f32 v{F+i}, v{F+i}, v6")
    for i in range(36):
        a(f"v_cvt_pk_bf16_f32 v{X+i}, v{F+2*i}, v{F+2*i+1}")
    for i in range(9):
        a(f"buffer_store_dwordx4 v[{X+4*i}:{X+4*i+3}], v3, s[12:15], 0 offen offset:{i*128}")
    a("v_lshlrev_b32 v1, 2, v1")
    a("v_cmp_eq_u32 vcc, 0, v2")
    a("s_and_saveexec_b64 s[20:21], vcc")
    a("buffer_store_dword v5, v1, s[16:19], 0 offen")
    a.label("pre_done")
    a("s_endpgm")
    return a.text(), 160

class G:
    def __init__(self, NW, TT, NT=9):
        self.NW, self.TT, self.NT = NW, TT, NT
        self.BM = NW * TT * 16
        self.BN = NT * 16
        self.RS = NT * 32
        self.XB = self.BM * 128
        self.XI = self.XB // 1024 // NW
        self.CPR = NT * 2
        self.WI = -(-self.CPR // NW)
        self.STG = self.XB + self.WI * NW * 1024
        self.LDS = 2 * self.STG
        v = 16
        self.acc = v; v += NT * TT * 4
        self.wf = v; v += 2 * NT * 4
        self.xf = v; v += 2 * TT * 4
        self.xo = v; v += self.XI
        self.wo = v; v += self.WI
        self.xr = v; v += 2
        self.wr = v; v += 1
        self.free = v
    def A(self, n, tt):
        b = self.acc + (n * self.TT + tt) * 4
        return b
sA, sW, sO, sB, sC = 4, 8, 12, 16, 20
s_lda, s_ldw, s_n, s_m0, s_n0, s_offA, s_offW, s_stepW, s_wave, s_lx, s_lw, s_mode = range(24, 36)
s_t0, s_t1, s_t2, s_t3 = 36, 37, 38, 39

def gemm_prologue(a, g):
    a("v_and_b32 v1, 63, v0")
    a("v_lshrrev_b32 v2, 6, v0")
    a("s_nop 0")
    a(f"v_readfirstlane_b32 s{s_wave}, v2")
    a("v_lshrrev_b32 v3, 3, v1")
    a("v_and_b32 v4, 7, v1")
    a("v_xor_b32 v4, v4, v3")
    a("v_lshlrev_b32 v4, 4, v4")
    a(f"s_mul_i32 s{s_t0}, s{s_wave}, {g.XI*8}")
    a(f"s_add_u32 s{s_t0}, s{s_t0}, s{s_m0}")
    a(f"v_add_u32 v3, s{s_t0}, v3")
    a(f"v_mul_lo_u32 v3, v3, s{s_lda}")
    a(f"v_add_u32 v{g.xo}, v3, v4")
    a(f"s_lshl_b32 s{s_t1}, s{s_lda}, 3")
    for i in range(1, g.XI):
        a(f"v_add_u32 v{g.xo+i}, s{s_t1}, v{g.xo+i-1}")
    a(f"s_mul_i32 s{s_t0}, s{s_wave}, {g.WI*64}")
    a(f"s_lshl_b32 s{s_t1}, s{s_n0}, 1")
    for i in range(g.WI):
        a(f"v_add_u32 v3, s{s_t0}, v1")
        if i:
            a(f"v_add_u32 v3, {i*64}, v3")
        assert g.CPR == 18
        a("v_mul_u32_u24 v4, 3641, v3")
        a("v_lshrrev_b32 v4, 16, v4")
        a("v_mul_u32_u24 v5, 18, v4")
        a("v_sub_u32 v5, v3, v5")
        a("v_and_b32 v6, 32, v4")
        a("v_and_b32 v7, 3, v4")
        a("v_add_u32 v6, v6, v7")
        a("v_bfe_u32 v7, v4, 2, 2")
        a("v_lshl_add_u32 v6, v7, 3, v6")
        a("v_bfe_u32 v7, v4, 4, 1")
        a("v_lshl_add_u32 v6, v7, 2, v6")
        a(f"v_mul_lo_u32 v6, v6, s{s_ldw}")
        a("v_lshl_add_u32 v6, v5, 4, v6")
        a(f"v_add_u32 v{g.wo+i}, s{s_t1}, v6")
        if (g.NW - 1) * g.WI + i >= g.CPR:
            a(f"v_mov_b32 v7, 0x80000000")
            a(f"v_cmp_le_u32 vcc, {g.CPR*64}, v3")
            a("s_nop 1")
            a(f"v_cndmask_b32 v{g.wo+i}, v{g.wo+i}, v7, vcc")
    a(f"s_mul_i32 s{s_lx}, s{s_wave}, {g.XI*1024}")
    a(f"s_mul_i32 s{s_lw}, s{s_wave}, {g.WI*1024}")
    a(f"s_add_u32 s{s_lw}, s{s_lw}, {g.XB}")
    a(f"s_lshl_b32 s{s_stepW}, s{s_ldw}, 6")
    a("v_and_b32 v3, 15, v1")
    a("v_lshrrev_b32 v4, 4, v1")
    a(f"s_mul_i32 s{s_t0}, s{s_wave}, {g.TT*16*128}")
    a("v_lshlrev_b32 v5, 7, v3")
    a(f"v_add_u32 v5, s{s_t0}, v5")
    a("v_and_b32 v6, 7, v1")
    a("v_xor_b32 v6, v6, v4")
    a(f"v_lshl_add_u32 v{g.xr}, v6, 4, v5")
    a(f"v_xor_b32 v{g.xr+1}, 64, v{g.xr}")
    a("v_lshrrev_b32 v5, 2, v3")
    a("v_lshl_add_u32 v5, v4, 2, v5")
    a(f"v_mul_u32_u24 v5, {g.RS}, v5")
    a("v_and_b32 v6, 3, v1")
    a("v_lshl_add_u32 v5, v6, 3, v5")
    a(f"v_add_u32 v{g.wr}, {g.XB}, v5")
    for i in range(g.NT * g.TT * 4):
        a(f"v_mov_b32 v{g.acc+i}, 0")

def dma_list(g, par):
    out = []
    for i in range(g.XI):
        out.append(f"s_add_u32 m0, s{s_lx}, {par*g.STG + i*1024}\ns_nop 0\nbuffer_load_dwordx4 v{g.xo+i}, s[{sA}:{sA+3}], s{s_offA} offen lds")
    for i in range(g.WI):
        out.append(f"s_add_u32 m0, s{s_lw}, {par*g.STG + i*1024}\ns_nop 0\nbuffer_load_dwordx4 v{g.wo+i}, s[{sW}:{sW+3}], s{s_offW} offen lds")
    return out

def gemm_stage(a, g, par, dma, swapped):
    NT, TT = g.NT, g.TT
    reads = []
    def xrd(s):
        for tt in range(TT):
            r = g.xf + (s * TT + tt) * 4
            reads.append((f"ds_read_b128 v[{r}:{r+3}], v{g.xr+s} offset:{par*g.STG + tt*2048}", ("x", s)))
    def wrd(u):
        s, n = divmod(u, NT)
        for h in range(2):
            r = g.wf + u * 4 + h * 2
            reads.append((f"ds_read_b64_tr_b16 v[{r}:{r+1}], v{g.wr} offset:{par*g.STG + (32*s+16*h)*g.RS + n*32}", ("w", u)))
    xrd(0)
    for u in range(2 * NT):
        if u == NT - 3:
            xrd(1)
        wrd(u)
    last = {}
    for i, (_, tag) in enumerate(reads):
        last[tag] = i
    dmas = dma_list(g, par ^ 1) if dma else []
    if dma:
        a(f"s_add_u32 s{s_offA}, s{s_offA}, 128")
        a(f"s_add_u32 s{s_offW}, s{s_offW}, s{s_stepW}")
    issued = 0
    PRE = TT + 2 * 5
    def issue(k):
        nonlocal issued
        for _ in range(k):
            if issued < len(reads):
                a(reads[issued][0]); issued += 1
    issue(PRE)
    for u in range(2 * NT):
        s, n = divmod(u, NT)
        need = max(last[("w", u)], last[("x", s)])
        assert issued > need
        cnt = issued - need - 1
        assert cnt <= 15
        a(f"s_waitcnt lgkmcnt({cnt})")
        for tt in range(TT):
            c = g.A(n, tt); wf = g.wf + u * 4; xf = g.xf + (s * TT + tt) * 4
            if swapped:
                a(f"v_mfma_f32_16x16x32_bf16 v[{c}:{c+3}], v[{xf}:{xf+3}], v[{wf}:{wf+3}], v[{c}:{c+3}]")
            else:
                a(f"v_mfma_f32_16x16x32_bf16 v[{c}:{c+3}], v[{wf}:{wf+3}], v[{xf}:{xf+3}], v[{c}:{c+3}]")
        tgt = last[("w", min(u + 5, 2 * NT - 1))] + 1
        issue(max(0, tgt - issued))
        if u < len(dmas):
            a(dmas[u])
    for d in dmas[2 * NT:]:
        a(d)
    if dma:
        a("s_waitcnt vmcnt(0)")
        a("s_barrier")

def gemm_main(a, g, swapped, tag):
    for d in dma_list(g, 0):
        a(d)
    a("s_waitcnt vmcnt(0)")
    a("s_barrier")
    a.label(f"{tag}_loop")
    a(f"s_cmp_eq_u32 s{s_n}, 1")
    a(f"s_cbranch_scc1 {tag}_last0")
    gemm_stage(a, g, 0, True, swapped)
    a(f"s_cmp_eq_u32 s{s_n}, 2")
    a(f"s_cbranch_scc1 {tag}_last1")
    gemm_stage(a, g, 1, True, swapped)
    a(f"s_sub_u32 s{s_n}, s{s_n}, 2")
    a(f"s_branch {tag}_loop")
    a.label(f"{tag}_last0")
    gemm_stage(a, g, 0, False, swapped)
    a(f"s_branch {tag}_end")
    a.label(f"{tag}_last1")
    gemm_stage(a, g, 1, False, swapped)
    a.label(f"{tag}_end")
    a("s_nop 7")
    a("s_nop 1")

def gen_gemm1():
    a = Asm(); g = G(4, 2)
    a("s_cmp_ge_u32 s2, 704")
    a("s_cbranch_scc1 g1_done")
    a("s_cmp_ge_u32 s2, 512")
    a("s_cbranch_scc1 g1_qkv_setup")
    srd_load(a, sA, "ws"); srd_load(a, sW, "w1"); srd_load(a, sO, "ws"); srd_load(a, sB, "b1")
    a(f"s_lshr_b32 s{s_m0}, s2, 5")
    a(f"s_lshl_b32 s{s_m0}, s{s_m0}, 7")
    a(f"s_and_b32 s{s_n0}, s2, 31")
    a(f"s_mul_i32 s{s_n0}, s{s_n0}, 144")
    a(f"s_mov_b32 s{s_ldw}, 9216")
    a(f"s_mov_b32 s{s_mode}, 0")
    a("s_waitcnt lgkmcnt(0)")
    srd_fin(a, sA, 2048*576*2, W.Y); srd_fin(a, sW, SZ["w1"]); srd_fin(a, sO, 2048*4608*2, W.H); srd_fin(a, sB, SZ["b1"])
    a("s_branch g1_common")
    a.label("g1_qkv_setup")
    srd_load(a, sA, "x"); srd_load(a, sW, "wqkv"); srd_load(a, sO, "ws"); srd_load(a, sB, "ws")
    a(f"s_sub_u32 s{s_t0}, s2, 512")
    a(f"s_mul_i32 s{s_t1}, s{s_t0}, 5462")
    a(f"s_lshr_b32 s{s_t1}, s{s_t1}, 16")
    a(f"s_mul_i32 s{s_t2}, s{s_t1}, 12")
    a(f"s_sub_u32 s{s_t2}, s{s_t0}, s{s_t2}")
    a(f"s_lshl_b32 s{s_m0}, s{s_t1}, 7")
    a(f"s_mul_i32 s{s_n0}, s{s_t2}, 144")
    a(f"s_mov_b32 s{s_ldw}, 3456")
    a(f"s_lshr_b32 s{s_mode}, s{s_t2}, 2")
    a(f"s_add_u32 s{s_mode}, s{s_mode}, 1")
    a("s_waitcnt lgkmcnt(0)")
    srd_fin(a, sA, SZ["x"]); srd_fin(a, sW, SZ["wqkv"])
    srd_fin(a, sO, 2 * 32*2048*48, W.QP); srd_fin(a, sB, 32*18*2048*2, W.VT)
    a.label("g1_common")
    a(f"s_mov_b32 s{s_lda}, 1152")
    a(f"s_mov_b32 s{s_offA}, 0")
    a(f"s_mov_b32 s{s_offW}, 0")
    a(f"s_mov_b32 s{s_n}, 9")
    gemm_prologue(a, g)
    BI = g.free
    T = BI + 18
    a(f"s_cmp_eq_u32 s{s_mode}, 3")
    a("s_cbranch_scc1 g1_v")
    a(f"s_cmp_lg_u32 s{s_mode}, 0")
    a("s_cbranch_scc1 g1_nobias")
    a("v_lshrrev_b32 v3, 4, v1")
    a(f"s_lshl_b32 s{s_t0}, s{s_n0}, 1")
    a(f"v_lshl_add_u32 v3, v3, 3, s{s_t0}")
    for n in range(9):
        a(f"buffer_load_dwordx2 v[{BI+2*n}:{BI+2*n+1}], v3, s[{sB}:{sB+3}], 0 offen offset:{n*32}")
    a.label("g1_nobias")
    gemm_main(a, g, False, "g1n")
    a("v_and_b32 v1, 63, v0")
    a("v_and_b32 v2, 15, v1")
    a("v_lshrrev_b32 v3, 4, v1")
    a(f"s_lshl_b32 s{s_t0}, s{s_wave}, 5")
    a(f"s_add_u32 s{s_t0}, s{s_t0}, s{s_m0}")
    a(f"v_add_u32 v2, s{s_t0}, v2")
    a(f"s_cmp_lg_u32 s{s_mode}, 0")
    a("s_cbranch_scc1 g1_epi_qk")
    a("v_mul_u32_u24 v4, 9216, v2")
    a(f"s_lshl_b32 s{s_t0}, s{s_n0}, 1")
    a(f"v_lshl_add_u32 v5, v3, 3, s{s_t0}")
    a("v_add_u32 v4, v4, v5")
    a(f"v_add_u32 v5, {16*9216}, v4")
    c1 = -2.0 * 0.7978845608028654 * 1.4426950408889634
    a(f"v_mov_b32 v6, {f32(c1)}")
    a(f"v_mov_b32 v7, {f32(c1 * 0.044715)}")
    for n in range(9):
        b = T
        a(f"v_lshlrev_b32 v{b}, 16, v{BI+2*n}")
        a(f"v_and_b32 v{b+1}, 0xffff0000, v{BI+2*n}")
        a(f"v_lshlrev_b32 v{b+2}, 16, v{BI+2*n+1}")
        a(f"v_and_b32 v{b+3}, 0xffff0000, v{BI+2*n+1}")
        z = [g.A(n, tt) + r for tt in range(2) for r in range(4)]
        t = [T + 4 + i for i in range(8)]
        for i in range(8): a(f"v_add_f32 v{z[i]}, v{z[i]}, v{b + (i & 3)}")
        for i in range(8): a(f"v_mul_f32 v{t[i]}, v{z[i]}, v{z[i]}")
        for i in range(8): a(f"v_fma_f32 v{t[i]}, v{t[i]}, v7, v6")
        for i in range(8): a(f"v_mul_f32 v{t[i]}, v{t[i]}, v{z[i]}")
        for i in range(8): a(f"v_exp_f32 v{t[i]}, v{t[i]}")
        for i in range(8): a(f"v_add_f32 v{t[i]}, 1.0, v{t[i]}")
        for i in range(8): a(f"v_rcp_f32 v{t[i]}, v{t[i]}")
        for i in range(8): a(f"v_mul_f32 v{z[i]}, v{z[i]}, v{t[i]}")
        for tt in range(2):
            c = g.A(n, tt)
            a(f"v_cvt_pk_bf16_f32 v{c}, v{c}, v{c+1}")
            a(f"v_cvt_pk_bf16_f32 v{c+1}, v{c+2}, v{c+3}")
            a(f"buffer_store_dwordx2 v[{c}:{c+1}], v{4+tt}, s[{sO}:{sO+3}], 0 offen offset:{n*32}")
    a("s_endpgm")
    a.label("g1_epi_qk")
    a(f"s_mov_b32 s{s_t1}, 1.0")
    a(f"s_cmp_eq_u32 s{s_mode}, 1")
    a(f"s_cselect_b32 s{s_t1}, {f32(18 ** -0.5 * 1.4426950408889634)}, s{s_t1}")
    a(f"s_cselect_b32 s{s_t2}, 0, {32*2048*48}")
    a(f"s_cselect_b32 s{s_t3}, 0, 576")
    a(f"s_sub_u32 s{s_t3}, s{s_n0}, s{s_t3}")
    a(f"s_mul_i32 s{s_t3}, s{s_t3}, 3641")
    a(f"s_lshr_b32 s{s_t3}, s{s_t3}, 16")
    a(f"s_mul_i32 s{s_t3}, s{s_t3}, 98304")
    a(f"s_add_u32 s{s_t2}, s{s_t2}, s{s_t3}")
    a("v_mul_u32_u24 v4, 48, v2")
    a(f"v_add_u32 v4, s{s_t2}, v4")
    a("v_lshlrev_b32 v5, 2, v3")
    for n in range(9):
        for p in range(2):
            a(f"v_add_u32 v6, {16*n + 2*p}, v5")
            a("v_mul_u32_u24 v7, 3641, v6")
            a("v_lshrrev_b32 v7, 16, v7")
            a("v_mul_u32_u24 v8, 18, v7")
            a("v_sub_u32 v6, v6, v8")
            a("v_mul_u32_u24 v7, 98304, v7")
            a("v_lshl_add_u32 v7, v6, 1, v7")
            a("v_add_u32 v7, v7, v4")
            for tt in range(2):
                c = g.A(n, tt) + 2 * p
                a(f"v_mul_f32 v{c}, s{s_t1}, v{c}")
                a(f"v_mul_f32 v{c+1}, s{s_t1}, v{c+1}")
                a(f"v_cvt_pk_bf16_f32 v{c}, v{c}, v{c+1}")
                a(f"buffer_store_dword v{c}, v7, s[{sO}:{sO+3}], 0 offen offset:{tt*768}")
    a("v_and_b32 v4, 127, v0")
    a(f"v_add_u32 v4, s{s_m0}, v4")
    a("v_mul_u32_u24 v4, 48, v4")
    a("v_lshrrev_b32 v5, 7, v0")
    a(f"v_mul_u32_u24 v5, {4*98304}, v5")
    a("v_add_u32 v4, v4, v5")
    a(f"v_add_u32 v4, s{s_t2}, v4")
    a("v_mov_b32 v8, 0"); a("v_mov_b32 v9, 0"); a("v_mov_b32 v10, 0")
    for hh in range(4):
        a(f"buffer_store_dwordx3 v[8:10], v4, s[{sO}:{sO+3}], 0 offen offset:36")
        if hh < 3:
            a("v_add_u32 v4, 0x18000, v4")
    a("s_endpgm")
    a.label("g1_v")
    gemm_main(a, g, True, "g1v")
    a("v_and_b32 v1, 63, v0")
    a("v_and_b32 v2, 15, v1")
    a("v_lshrrev_b32 v3, 4, v1")
    a(f"s_sub_u32 s{s_t0}, s{s_n0}, 1152")
    a(f"v_add_u32 v2, s{s_t0}, v2")
    a("v_lshlrev_b32 v2, 12, v2")
    a("v_and_b32 v4, 1, v3")
    a("v_lshlrev_b32 v4, 3, v4")
    a("v_lshrrev_b32 v5, 1, v3")
    a("v_lshl_add_u32 v4, v5, 2, v4")
    a(f"s_lshl_b32 s{s_t0}, s{s_wave}, 5")
    a(f"s_add_u32 s{s_t0}, s{s_t0}, s{s_m0}")
    a(f"v_add_u32 v4, s{s_t0}, v4")
    a("v_lshl_add_u32 v2, v4, 1, v2")
    for n in range(9):
        for tt in range(2):
            c = g.A(n, tt)
            a(f"v_cvt_pk_bf16_f32 v{c}, v{c}, v{c+1}")
            a(f"v_cvt_pk_bf16_f32 v{c+1}, v{c+2}, v{c+3}")
            a(f"buffer_store_dwordx2 v[{c}:{c+1}], v2, s[{sB}:{sB+3}], 0 offen offset:{tt*32}")
        if n < 8:
            a("v_add_u32 v2, 0x10000, v2")
    a.label("g1_done")
    a("s_endpgm")
    return a.text(), T + 12, g.LDS

def gen_fc2():
    a = Asm(); g = G(4, 2)
    a("s_cmp_ge_u32 s2, 256")
    a("s_cbranch_scc1 f2_done")
    srd_load(a, sA, "ws"); srd_load(a, sW, "w2"); srd_load(a, sO, "ws")
    a(f"s_lshr_b32 s{s_m0}, s2, 4")
    a(f"s_lshl_b32 s{s_m0}, s{s_m0}, 7")
    a(f"s_and_b32 s{s_n0}, s2, 3")
    a(f"s_mul_i32 s{s_n0}, s{s_n0}, 144")
    a(f"s_bfe_u32 s{s_mode}, s2, 0x20002")
    a(f"s_mul_i32 s{s_offA}, s{s_mode}, {1152*2}")
    a(f"s_mul_i32 s{s_offW}, s{s_mode}, {1152*1152}")
    a(f"s_mov_b32 s{s_lda}, 9216")
    a(f"s_mov_b32 s{s_ldw}, 1152")
    a(f"s_mov_b32 s{s_n}, 18")
    a("s_waitcnt lgkmcnt(0)")
    srd_fin(a, sA, 2048*4608*2, W.H); srd_fin(a, sW, SZ["w2"]); srd_fin(a, sO, 4*2048*576*4, W.P)
    gemm_prologue(a, g)
    gemm_main(a, g, False, "f2")
    a("v_and_b32 v1, 63, v0")
    a("v_and_b32 v2, 15, v1")
    a("v_lshrrev_b32 v3, 4, v1")
    a(f"s_lshl_b32 s{s_t0}, s{s_wave}, 5")
    a(f"s_add_u32 s{s_t0}, s{s_t0}, s{s_m0}")
    a(f"s_lshl_b32 s{s_t1}, s{s_mode}, 11")
    a(f"s_add_u32 s{s_t0}, s{s_t0}, s{s_t1}")
    a(f"v_add_u32 v2, s{s_t0}, v2")
    a("v_mul_u32_u24 v4, 2304, v2")
    a(f"s_lshl_b32 s{s_t0}, s{s_n0}, 2")
    a(f"v_lshl_add_u32 v5, v3, 4, s{s_t0}")
    a("v_add_u32 v4, v4, v5")
    a(f"v_add_u32 v5, {16*2304}, v4")
    for n in range(9):
        for tt in range(2):
            c = g.A(n, tt)
            a(f"buffer_store_dwordx4 v[{c}:{c+3}], v{4+tt}, s[{sO}:{sO+3}], 0 offen offset:{n*64}")
    a.label("f2_done")
    a("s_endpgm")
    return a.text(), g.free + 4, g.LDS

def gen_fin():
    a = Asm(); g = G(2, 1)
    a("s_cmp_ge_u32 s2, 256")
    a("s_cbranch_scc1 fn_done")
    srd_load(a, sA, "ws"); srd_load(a, sW, "wo"); srd_load(a, sO, "out"); srd_load(a, sB, "b2"); srd_load(a, sC, "ws")
    a("s_load_dwordx2 s[40:41], s[0:1], 88")
    a(f"s_lshr_b32 s{s_m0}, s2, 2")
    a(f"s_lshl_b32 s{s_m0}, s{s_m0}, 5")
    a(f"s_and_b32 s{s_n0}, s2, 3")
    a(f"s_mul_i32 s{s_n0}, s{s_n0}, 144")
    a(f"s_mov_b32 s{s_offA}, 0")
    a(f"s_mov_b32 s{s_offW}, 0")
    a(f"s_mov_b32 s{s_lda}, 1152")
    a(f"s_mov_b32 s{s_ldw}, 1152")
    a(f"s_mov_b32 s{s_n}, 9")
    a("s_waitcnt lgkmcnt(0)")
    srd_fin(a, sA, 2048*576*2, W.O); srd_fin(a, sW, SZ["wo"]); srd_fin(a, sO, SZ["out"]); srd_fin(a, sB, SZ["b2"])
    srd_fin(a, sC, 4*2048*576*4, W.P); srd_fin(a, 40, 2048*4, W.G)
    gemm_prologue(a, g)
    BI = g.free
    GG = BI + 18
    T = GG + 2
    a("v_and_b32 v2, 15, v1")
    a("v_lshrrev_b32 v3, 4, v1")
    a(f"s_lshl_b32 s{s_t0}, s{s_wave}, 4")
    a(f"s_add_u32 s{s_t0}, s{s_t0}, s{s_m0}")
    a(f"v_add_u32 v2, s{s_t0}, v2")
    a(f"s_lshl_b32 s{s_t0}, s{s_n0}, 1")
    a(f"v_lshl_add_u32 v4, v3, 3, s{s_t0}")
    for n in range(9):
        a(f"buffer_load_dwordx2 v[{BI+2*n}:{BI+2*n+1}], v4, s[{sB}:{sB+3}], 0 offen offset:{n*32}")
    a("v_lshlrev_b32 v5, 2, v2")
    a(f"buffer_load_dword v{GG}, v5, s[40:43], 0 offen")
    a("v_mul_u32_u24 v5, 2304, v2")
    a(f"s_lshl_b32 s{s_t0}, s{s_n0}, 2")
    a(f"v_lshl_add_u32 v6, v3, 4, s{s_t0}")
    a("v_add_u32 v5, v5, v6")
    for sp in range(4):
        for n in range(9):
            r = sp * 36 + n * 4
            a(f"buffer_load_dwordx4 a[{r}:{r+3}], v5, s[{sC}:{sC+3}], 0 offen offset:{n*64}")
        if sp < 3:
            a(f"v_add_u32 v5, {2048*2304}, v5")
    a("v_mul_u32_u24 v8, 1152, v2")
    a("v_add_u32 v8, v8, v4")
    gemm_main(a, g, False, "fn")
    a("s_waitcnt vmcnt(0)")
    a(f"v_sub_f32 v{GG+1}, 1.0, v{GG}")
    for n in range(9):
        b = T
        a(f"v_lshlrev_b32 v{b}, 16, v{BI+2*n}")
        a(f"v_and_b32 v{b+1}, 0xffff0000, v{BI+2*n}")
        a(f"v_lshlrev_b32 v{b+2}, 16, v{BI+2*n+1}")
        a(f"v_and_b32 v{b+3}, 0xffff0000, v{BI+2*n+1}")
        c = g.A(n, 0)
        for sp in range(4):
            for r in range(4):
                a(f"v_accvgpr_read_b32 v{T+4+sp*4+r}, a{sp*36+n*4+r}")
        for r in range(4):
            p = T + 4 + r
            a(f"v_add_f32 v{p}, v{p}, v{p+4}")
            a(f"v_add_f32 v{p+8}, v{p+8}, v{p+12}")
            a(f"v_add_f32 v{p}, v{p}, v{p+8}")
            a(f"v_add_f32 v{p}, v{p}, v{b+r}")
            a(f"v_mul_f32 v{p}, v{p}, v{GG+1}")
            a(f"v_fmac_f32 v{p}, v{c+r}, v{GG}")
        p = T + 4
        a(f"v_cvt_pk_bf16_f32 v{c}, v{p}, v{p+1}")
        a(f"v_cvt_pk_bf16_f32 v{c+1}, v{p+2}, v{p+3}")
        a(f"buffer_store_dwordx2 v[{c}:{c+1}], v8, s[{sO}:{sO+3}], 0 offen offset:{n*32}")
    a.label("fn_done")
    a("s_endpgm")
    return a.text(), (T + 20, 144), g.LDS

def gen_attn():
    a = Asm()
    KB = 24576; VOFF = KB; BUF1 = 0x10000
    LDS = BUF1 + KB + 19 * 1024
    sK, sV, sQ, sOo = 4, 8, 12, 16
    s_h, s_q0, s_w, s_koff, s_voff, s_mk, s_mv, s_c, s_thr = 24, 25, 26, 27, 28, 29, 30, 31, 32
    S = [16, 32]; NM = 48; O = 64; Q0 = 80; Q1 = 84; P = 88
    KF = [96, 104]; VF = 112
    vK0, vK1 = 120, 121; vV = 122
    dK = 130; dV = 131
    t0, t1, t2, t3 = 134, 135, 136, 137
    vmx = 138
    NV = 140
    a("s_cmp_ge_u32 s2, 256")
    a("s_cbranch_scc1 at_done")
    srd_load(a, sK, "ws"); srd_load(a, sV, "ws"); srd_load(a, sQ, "ws"); srd_load(a, sOo, "ws")
    a(f"s_and_b32 s{s_h}, s2, 31")
    a(f"s_lshr_b32 s{s_q0}, s2, 5")
    a(f"s_lshl_b32 s{s_q0}, s{s_q0}, 8")
    a("v_and_b32 v1, 63, v0")
    a("v_lshrrev_b32 v2, 6, v0")
    a("s_nop 0")
    a(f"v_readfirstlane_b32 s{s_w}, v2")
    a("v_and_b32 v2, 31, v1")
    a("v_lshrrev_b32 v3, 5, v1")
    a("s_waitcnt lgkmcnt(0)")
    srd_fin(a, sK, 32*2048*48, W.KP); srd_fin(a, sV, 32*18*4096, W.VT); srd_fin(a, sQ, 32*2048*48, W.QP); srd_fin(a, sOo, 2048*576*2, W.O)
    a(f"s_lshl_b32 s{s_c}, s{s_h}, 11")
    a(f"s_add_u32 s{s_c}, s{s_c}, s{s_q0}")
    a(f"s_lshl_b32 s33, s{s_w}, 5")
    a(f"s_add_u32 s{s_c}, s{s_c}, s33")
    a(f"v_add_u32 v4, s{s_c}, v2")
    a("v_mul_u32_u24 v4, 48, v4")
    a("v_lshl_add_u32 v5, v3, 4, v4")
    a(f"buffer_load_dwordx4 v[{Q0}:{Q0+3}], v5, s[{sQ}:{sQ+3}], 0 offen")
    a(f"buffer_load_dwordx4 v[{Q1}:{Q1+3}], v4, s[{sQ}:{sQ+3}], 0 offen offset:32")
    a(f"s_mul_i32 s33, s{s_w}, 3072")
    a(f"v_lshlrev_b32 v{dK}, 4, v1")
    a(f"v_add_u32 v{dK}, s33, v{dK}")
    a(f"s_mul_i32 s{s_koff}, s{s_h}, 98304")
    a(f"s_mov_b32 s{s_voff}, 0")
    a(f"s_mul_i32 s34, s{s_h}, 18")
    for i in range(3):
        if i < 2:
            a(f"s_lshl_b32 s35, s{s_w}, 1")
            if i: a("s_add_u32 s35, s35, 1")
        else:
            a(f"s_add_u32 s35, s{s_w}, 16")
        a("s_and_b32 s36, s35, 15")
        a(f"v_xor_b32 v4, s36, v1")
        a("v_lshlrev_b32 v4, 4, v4")
        a("s_add_u32 s36, s35, s34")
        a("s_lshl_b32 s36, s36, 12")
        a(f"v_add_u32 v{dV+i}, s36, v4")
    a(f"s_mul_i32 s{s_mk}, s{s_w}, 3072")
    a(f"s_lshl_b32 s{s_mv}, s{s_w}, 11")
    a(f"s_add_u32 s{s_mv}, s{s_mv}, {VOFF}")
    def dma(toggle):
        a(f"s_mov_b32 m0, s{s_mk}")
        a("s_nop 0")
        for i in range(3):
            a(f"buffer_load_dwordx4 v{dK}, s[{sK}:{sK+3}], s{s_koff} offen offset:{i*1024} lds")
        a(f"s_mov_b32 m0, s{s_mv}")
        a("s_nop 0")
        a(f"buffer_load_dwordx4 v{dV}, s[{sV}:{sV+3}], s{s_voff} offen lds")
        a(f"s_add_u32 m0, s{s_mv}, 1024")
        a("s_nop 0")
        a(f"buffer_load_dwordx4 v{dV+1}, s[{sV}:{sV+3}], s{s_voff} offen lds")
        a(f"s_cmp_ge_u32 s{s_w}, 2")
        a(f"s_cbranch_scc1 at_dskip{toggle}")
        a(f"s_lshl_b32 s33, s{s_w}, 10")
        a(f"s_sub_u32 s33, s{s_mv}, s33")
        a(f"s_add_u32 m0, s33, {16*1024}")
        a("s_nop 0")
        a(f"buffer_load_dwordx4 v{dV+2}, s[{sV}:{sV+3}], s{s_voff} offen lds")
        a.label(f"at_dskip{toggle}")
        a(f"s_add_u32 s{s_koff}, s{s_koff}, {KB}")
        a(f"s_add_u32 s{s_voff}, s{s_voff}, 1024")
        a(f"s_xor_b32 s{s_mk}, s{s_mk}, {BUF1}")
        a(f"s_xor_b32 s{s_mv}, s{s_mv}, {BUF1}")
    dma("a")
    dma("b")
    a("v_lshlrev_b32 v4, 2, v0")
    a("v_and_b32 v5, 1023, v4")
    a("v_lshrrev_b32 v6, 10, v4")
    a("v_lshlrev_b32 v6, 16, v6")
    a("v_add_u32 v5, v5, v6")
    a(f"v_add_u32 v5, {VOFF + 18*1024}, v5")
    a("v_mov_b32 v6, 0x3f803f80")
    a("ds_write_b32 v5, v6")
    a(f"v_mul_u32_u24 v{vK1}, 48, v2")
    a(f"v_lshl_add_u32 v{vK0}, v3, 4, v{vK1}")
    a(f"v_add_u32 v{vK1}, 32, v{vK1}")
    a("v_min_u32 v4, 18, v2")
    a("v_and_b32 v5, 15, v4")
    a("v_lshlrev_b32 v4, 10, v4")
    a(f"v_add_u32 v4, {VOFF}, v4")
    for i in range(8):
        a(f"v_add_u32 v6, {2*i}, v3")
        a("v_xor_b32 v6, v6, v5")
        a(f"v_lshl_add_u32 v{vV+i}, v6, 4, v4")
    for r in range(16):
        a(f"v_mov_b32 v{NM+r}, 0")
        a(f"v_mov_b32 v{O+r}, 0")
    a(f"s_mov_b32 s{s_thr}, {f32(10.0)}")
    a("s_waitcnt vmcnt(0) lgkmcnt(0)")
    a("v_cmp_lt_u32 vcc, 31, v1")
    a("v_mov_b32 v4, 0")
    a("s_nop 1")
    for r in range(4):
        a(f"v_cndmask_b32 v{Q1+r}, v{Q1+r}, v4, vcc")
    a("s_barrier")
    def kread(tile, kf):
        a(f"ds_read_b128 v[{kf}:{kf+3}], v{vK0} offset:{tile*1536}")
        a(f"ds_read_b128 v[{kf+4}:{kf+7}], v{vK1} offset:{tile*1536}")
    def qk(kf, s):
        a(f"v_mfma_f32_32x32x16_bf16 v[{s}:{s+15}], v[{kf}:{kf+3}], v[{Q0}:{Q0+3}], v[{NM}:{NM+15}]")
        a(f"v_mfma_f32_32x32x16_bf16 v[{s}:{s+15}], v[{kf+4}:{kf+7}], v[{Q1}:{Q1+3}], v[{s}:{s+15}]")
    def maxtree(s):
        a(f"v_max3_f32 v{t0}, v{s}, v{s+1}, v{s+2}")
        a(f"v_max3_f32 v{t1}, v{s+3}, v{s+4}, v{s+5}")
        a(f"v_max3_f32 v{t2}, v{s+6}, v{s+7}, v{s+8}")
        a(f"v_max3_f32 v{t3}, v{s+9}, v{s+10}, v{s+11}")
        a(f"v_max3_f32 v{t0}, v{t0}, v{s+12}, v{s+13}")
        a(f"v_max3_f32 v{t1}, v{t1}, v{s+14}, v{s+15}")
        a(f"v_max3_f32 v{t0}, v{t0}, v{t1}, v{t2}")
        a(f"v_max_f32 v{vmx}, v{t0}, v{t3}")
    def xhalf_max():
        a(f"v_mov_b32 v{t0}, v{vmx}")
        a("s_nop 1")
        a(f"v_permlane32_swap_b32 v{t0}, v{vmx}")
        a("s_nop 1")
        a(f"v_max_f32 v{vmx}, v{vmx}, v{t0}")
    kread(0, KF[0]); kread(1, KF[1])
    a("s_waitcnt lgkmcnt(2)")
    qk(KF[0], S[0])
    a("s_nop 15"); a("s_nop 3")
    maxtree(S[0])
    xhalf_max()
    a(f"v_sub_f32 v{t0}, 0, v{vmx}")
    for r in range(16):
        a(f"v_mov_b32 v{NM+r}, v{t0}")
    a("s_nop 1")
    qk(KF[0], S[0])
    a(f"s_mov_b32 s{s_c}, 0")
    a.label("at_chunk")
    for t in range(16):
        cur, nxt = S[t & 1], S[(t + 1) & 1]
        if t == 14:
            a(f"s_cmp_eq_u32 s{s_c}, 3")
            a("s_cbranch_scc1 at_nb14")
            a("s_waitcnt vmcnt(0)")
            a("s_barrier")
            a.label("at_nb14")
        if t == 1:
            a(f"s_cmp_eq_u32 s{s_c}, 0")
            a("s_cbranch_scc1 at_nb1")
            a(f"s_cmp_eq_u32 s{s_c}, 3")
            a("s_cbranch_scc1 at_nb1")
            a("s_barrier")
            dma("c")
            a.label("at_nb1")
        i0 = (t & 3) * 2
        a(f"ds_read_b128 v[{VF}:{VF+3}], v{vV+i0} offset:{(t>>2)*256}")
        a(f"ds_read_b128 v[{VF+4}:{VF+7}], v{vV+i0+1} offset:{(t>>2)*256}")
        last_tile = (t == 15)
        if last_tile:
            a(f"s_cmp_eq_u32 s{s_c}, 3")
            a("s_cbranch_scc1 at_noqk")
        a("s_waitcnt lgkmcnt(2)")
        qk(KF[(t + 1) & 1], nxt)
        if t + 2 < 16:
            kread(t + 2, KF[t & 1])
        else:
            if t == 14:
                a(f"v_xor_b32 v{vK0}, {BUF1}, v{vK0}")
                a(f"v_xor_b32 v{vK1}, {BUF1}, v{vK1}")
            kread(t + 2 - 16, KF[t & 1])
        if last_tile:
            a.label("at_noqk")
        maxtree(cur)
        a(f"v_cmp_lt_f32 vcc, s{s_thr}, v{vmx}")
        a(f"s_cbranch_vccnz at_slow{t}")
        a.label(f"at_back{t}")
        for r in range(16):
            a(f"v_exp_f32 v{cur+r}, v{cur+r}")
        for r in range(8):
            a(f"v_cvt_pk_bf16_f32 v{P+r}, v{cur+2*r}, v{cur+2*r+1}")
        a("s_waitcnt lgkmcnt(2)" if not last_tile else "s_waitcnt lgkmcnt(0)")
        a(f"v_mfma_f32_32x32x16_bf16 v[{O}:{O+15}], v[{VF}:{VF+3}], v[{P}:{P+3}], v[{O}:{O+15}]")
        a(f"v_mfma_f32_32x32x16_bf16 v[{O}:{O+15}], v[{VF+4}:{VF+7}], v[{P+4}:{P+7}], v[{O}:{O+15}]")
        L = a.late
        L.append(f"at_slow{t}:")
        def l(s): L.append("    " + s)
        l("s_nop 15"); l("s_nop 15"); l("s_nop 15")
        l(f"v_mov_b32 v{t0}, v{vmx}")
        l("s_nop 1")
        l(f"v_permlane32_swap_b32 v{t0}, v{vmx}")
        l("s_nop 1")
        l(f"v_max_f32 v{vmx}, v{vmx}, v{t0}")
        l(f"v_max_f32 v{vmx}, 0, v{vmx}")
        l(f"v_sub_f32 v{t1}, 0, v{vmx}")
        l(f"v_exp_f32 v{t1}, v{t1}")
        for r in range(16):
            l(f"v_sub_f32 v{cur+r}, v{cur+r}, v{vmx}")
            l(f"v_sub_f32 v{nxt+r}, v{nxt+r}, v{vmx}")
            l(f"v_sub_f32 v{NM+r}, v{NM+r}, v{vmx}")
            l(f"v_mul_f32 v{O+r}, v{O+r}, v{t1}")
        l("s_nop 1")
        l(f"s_branch at_back{t}")
    for i in range(8):
        a(f"v_xor_b32 v{vV+i}, {BUF1}, v{vV+i}")
    a(f"s_add_u32 s{s_c}, s{s_c}, 1")
    a(f"s_cmp_lt_u32 s{s_c}, 4")
    a("s_cbranch_scc1 at_chunk")
    a("s_nop 15"); a("s_nop 3")
    a(f"v_rcp_f32 v{t0}, v{O+10}")
    a("s_nop 1")
    a(f"v_mov_b32 v{t1}, v{t0}")
    a("s_nop 1")
    a(f"v_permlane32_swap_b32 v{t1}, v{t0}")
    a("s_nop 1")
    for r in range(10):
        a(f"v_mul_f32 v{O+r}, v{O+r}, v{t1}")
    for r in range(5):
        a(f"v_cvt_pk_bf16_f32 v{P+r}, v{O+2*r}, v{O+2*r+1}")
    a(f"s_lshl_b32 s33, s{s_w}, 5")
    a(f"s_add_u32 s33, s33, s{s_q0}")
    a("v_and_b32 v2, 31, v0")
    a("v_bfe_u32 v3, v0, 5, 1")
    a("v_add_u32 v4, s33, v2")
    a("v_mul_u32_u24 v4, 1152, v4")
    a(f"s_mul_i32 s33, s{s_h}, 36")
    a("v_lshl_add_u32 v4, v3, 3, v4")
    a("v_add_u32 v4, s33, v4")
    a(f"buffer_store_dwordx2 v[{P}:{P+1}], v4, s[{sOo}:{sOo+3}], 0 offen")
    a(f"buffer_store_dwordx2 v[{P+2}:{P+3}], v4, s[{sOo}:{sOo+3}], 0 offen offset:16")
    a("s_mov_b64 exec, 0xffffffff")
    a(f"buffer_store_dword v{P+4}, v4, s[{sOo}:{sOo+3}], 0 offen offset:32")
    a.label("at_done")
    a("s_endpgm")
    return a.text() + "\n".join(a.late) + "\n", NV, LDS

def main():
    pre, pre_v = gen_pre()
    g1, g1_v, g1_l = gen_gemm1()
    at, at_v, at_l = gen_attn()
    f2, f2_v, f2_l = gen_fc2()
    fn, fn_v, fn_l = gen_fin()
    ks = [("pre_kernel", pre, pre_v, 0, 256, 64), ("gemm1_kernel", g1, g1_v, g1_l, 704, 256),
          ("attn_kernel", at, at_v, at_l, 256, 512), ("fc2_kernel", f2, f2_v, f2_l, 256, 256),
          ("fin_kernel", fn, fn_v, fn_l, 256, 128)]
    o = "; gated_mix: softmax MHA + mixer channel MLP, generated by dev/gen.py\n"
    for n, _, _, l, gr, bl in ks:
        o += f"; @launch kernel={n} grid=({gr},1,1) block=({bl},1,1) lds={l}\n"
    o += '.amdgcn_target "amdgcn-amd-amdhsa--gfx950"\n.text\n'
    for n, t, *_ in ks:
        o += kernel_header(n) + t
    o += '.section .rodata,"a"\n'
    for n, _, v, *_ in ks:
        o += kernel_desc(n, v)
    path = sys.argv[1] if len(sys.argv) > 1 else "gated_mix__softmax_full_mha__mixer_channel_mlp__prompt.s"
    open(path, "w").write(o)
    print("wrote", path, len(o), "bytes; vgprs", [(k[0], k[2], k[3]) for k in ks])

main()
```

```python
import sys, struct, os
import wsmap as W
EXP = os.environ.get("EXP", "")
SC = "" if "nosc" in EXP else " sc1"

def f32(x):
    return "0x%08x" % struct.unpack("<I", struct.pack("<f", x))[0]

class Asm:
    def __init__(self):
        self.lines = []
        self.late = []
    def __call__(self, s):
        for l in s.strip("\n").split("\n"):
            self.lines.append("    " + l.strip())
    def label(self, l):
        self.lines.append(l + ":")
    def text(self):
        return "\n".join(self.lines) + "\n"

KA = dict(x=0, wqkv=8, wo=16, w1=32, b1=40, w2=48, b2=56, gw=64, out=72, dbg=80, ws=88)
SZ = dict(x=2048*576*2, wqkv=576*1728*2, wo=576*576*2, w1=576*4608*2, b1=4608*2, w2=4608*576*2, b2=576*2, gw=576*2, out=2048*576*2)

def srd_load(a, s, name):
    a(f"s_load_dwordx2 s[{s}:{s+1}], s[0:1], {KA[name]}")

def srd_fin(a, s, size, off=0):
    if off:
        a(f"s_add_u32 s{s}, s{s}, {off:#x}")
        a(f"s_addc_u32 s{s+1}, s{s+1}, 0")
    a(f"s_mov_b32 s{s+2}, {size:#x}")
    a(f"s_mov_b32 s{s+3}, 0x20000")

def kernel_header(name):
    return f""".globl {name}
.p2align 8
.type {name},@function
{name}:
"""

def kernel_desc(name, vgpr, sgpr=102):
    ag = 0
    if isinstance(vgpr, tuple):
        vgpr, ag = vgpr
    acc = (vgpr + 3) // 4 * 4
    if ag:
        vgpr = acc + ag
    return f""".p2align 6
.amdhsa_kernel {name}
  .amdhsa_next_free_vgpr {vgpr}
  .amdhsa_next_free_sgpr {sgpr}
  .amdhsa_accum_offset {acc}
  .amdhsa_group_segment_fixed_size 0
  .amdhsa_kernarg_size 96
  .amdhsa_user_sgpr_count 2
  .amdhsa_user_sgpr_kernarg_segment_ptr 1
  .amdhsa_system_sgpr_workgroup_id_x 1
.end_amdhsa_kernel
"""

def gen_pre():
    a = Asm()
    a("s_cmp_ge_u32 s2, 256")
    a("s_cbranch_scc1 pre_done")
    srd_load(a, 4, "x"); srd_load(a, 8, "gw"); srd_load(a, 12, "ws"); srd_load(a, 16, "ws")
    a("v_lshrrev_b32 v1, 3, v0")
    a("v_and_b32 v2, 7, v0")
    a("s_lshl_b32 s3, s2, 3")
    a("v_add_u32 v1, s3, v1")
    a("v_mul_u32_u24 v3, 1152, v1")
    a("v_lshlrev_b32 v2, 4, v2")
    a("v_add_u32 v3, v3, v2")
    a("s_waitcnt lgkmcnt(0)")
    srd_fin(a, 4, SZ["x"]); srd_fin(a, 8, SZ["gw"])
    srd_fin(a, 12, 2048*576*2, W.Y); srd_fin(a, 16, 2048*4, W.G)
    X = 8
    Gw = 44
    F = 80
    for i in range(9):
        a(f"buffer_load_dwordx4 v[{X+4*i}:{X+4*i+3}], v3, s[4:7], 0 offen offset:{i*128}")
    for i in range(9):
        a(f"buffer_load_dwordx4 v[{Gw+4*i}:{Gw+4*i+3}], v2, s[8:11], 0 offen offset:{i*128}")
    a("s_waitcnt vmcnt(9)")
    for i in range(36):
        a(f"v_lshlrev_b32 v{F+2*i}, 16, v{X+i}")
        a(f"v_and_b32 v{F+2*i+1}, 0xffff0000, v{X+i}")
    a(f"v_add_f32 v4, v{F}, v{F+1}")
    a(f"v_add_f32 v5, v{F+2}, v{F+3}")
    for i in range(4, 72, 2):
        a(f"v_add_f32 v4, v4, v{F+i}")
        a(f"v_add_f32 v5, v5, v{F+i+1}")
    a("v_add_f32 v4, v4, v5")
    def red8(r):
        a("s_nop 1")
        a(f"v_add_f32_dpp v{r}, v{r}, v{r} quad_perm:[1,0,3,2] row_mask:0xf bank_mask:0xf")
        a("s_nop 1")
        a(f"v_add_f32_dpp v{r}, v{r}, v{r} quad_perm:[2,3,0,1] row_mask:0xf bank_mask:0xf")
        a("s_nop 1")
        a(f"v_add_f32_dpp v{r}, v{r}, v{r} row_half_mirror row_mask:0xf bank_mask:0xf")
    red8(4)
    a(f"v_mul_f32 v4, {f32(1.0/576)}, v4")
    a("s_waitcnt vmcnt(0)")
    a("v_mov_b32 v5, 0")
    a("v_mov_b32 v6, 0")
    a("v_mov_b32 v7, 0")
    a("v_mov_b32 v152, 0")
    for i in range(36):
        a(f"v_lshlrev_b32 v153, 16, v{Gw+i}")
        a(f"v_and_b32 v154, 0xffff0000, v{Gw+i}")
        a(f"v_fmac_f32 v5, v{F+2*i}, v153")
        a(f"v_fmac_f32 v6, v{F+2*i+1}, v154")
        a(f"v_sub_f32 v{F+2*i}, v{F+2*i}, v4")
        a(f"v_sub_f32 v{F+2*i+1}, v{F+2*i+1}, v4")
        a(f"v_fmac_f32 v7, v{F+2*i}, v{F+2*i}")
        a(f"v_fmac_f32 v152, v{F+2*i+1}, v{F+2*i+1}")
    a("v_add_f32 v5, v5, v6")
    a("v_add_f32 v7, v7, v152")
    red8(5); red8(7)
    a(f"v_mov_b32 v6, {f32(1e-5)}")
    a(f"v_fmac_f32 v6, {f32(1.0/576)}, v7")
    a("v_rsq_f32 v6, v6")
    a(f"v_mul_f32 v5, {f32(-1.4426950408889634)}, v5")
    a("v_exp_f32 v5, v5")
    a("s_nop 0")
    a("v_add_f32 v5, 1.0, v5")
    a("v_rcp_f32 v5, v5")
    for i in range(72):
        a(f"v_mul_f32 v{F+i}, v{F+i}, v6")
    for i in range(36):
        a(f"v_cvt_pk_bf16_f32 v{X+i}, v{F+2*i}, v{F+2*i+1}")
    for i in range(9):
        a(f"buffer_store_dwordx4 v[{X+4*i}:{X+4*i+3}], v3, s[12:15], 0 offen offset:{i*128}")
    a("v_lshlrev_b32 v1, 2, v1")
    a("v_cmp_eq_u32 vcc, 0, v2")
    a("s_and_saveexec_b64 s[20:21], vcc")
    a("buffer_store_dword v5, v1, s[16:19], 0 offen")
    a.label("pre_done")
    a("s_endpgm")
    return a.text(), 160

NB = 4
class G:
    def __init__(self, NW, TT, NT=9):
        self.NW, self.TT, self.NT = NW, TT, NT
        self.BM = NW * TT * 16
        self.BN = NT * 16
        self.RS = NT * 32
        self.CPR = NT * 2
        self.WI = -(-self.CPR // NW)
        self.STG = self.CPR * 1024
        self.ND = self.WI * NW - self.CPR
        self.LDS = NB * self.STG + (1024 * self.ND)
        self.XL = 2 * TT
        self.LPS = self.XL + self.WI
        v = 16
        self.acc = v; v += NT * TT * 4
        self.wf = v; v += NT * 4
        self.xf = v; v += NB * 2 * TT * 4
        self.xo = v; v += TT
        self.wo = v; v += self.WI
        self.wr = v; v += 2
        self.free = (v + 3) // 4 * 4
    def A(self, n, tt):
        return self.acc + (n * self.TT + tt) * 4
    def X(self, st, s, tt):
        return self.xf + (((st % NB) * 2 + s) * self.TT + tt) * 4
sA, sW, sO, sB, sC = 4, 8, 12, 16, 20
s_lda, s_ldw, s_n, s_m0, s_n0, s_offA, s_offW, s_stepW, s_wave, s_lx, s_lw, s_mode = range(24, 36)
s_t0, s_t1, s_t2, s_t3 = 36, 37, 38, 39

def gemm_prologue(a, g):
    a("v_and_b32 v1, 63, v0")
    a("v_lshrrev_b32 v2, 6, v0")
    a("s_nop 0")
    a(f"v_readfirstlane_b32 s{s_wave}, v2")
    a("v_and_b32 v3, 15, v1")
    a("v_lshrrev_b32 v4, 4, v1")
    a(f"s_mul_i32 s{s_t0}, s{s_wave}, {g.TT*16}")
    a(f"s_add_u32 s{s_t0}, s{s_t0}, s{s_m0}")
    a(f"v_add_u32 v5, s{s_t0}, v3")
    a(f"v_mul_lo_u32 v5, v5, s{s_lda}")
    a(f"v_lshl_add_u32 v{g.xo}, v4, 4, v5")
    a(f"s_lshl_b32 s{s_t1}, s{s_lda}, 4")
    for i in range(1, g.TT):
        a(f"v_add_u32 v{g.xo+i}, s{s_t1}, v{g.xo+i-1}")
    a("v_lshrrev_b32 v5, 2, v3")
    a("v_lshl_add_u32 v5, v4, 2, v5")
    a(f"v_mul_u32_u24 v5, {g.RS}, v5")
    a("v_and_b32 v6, 3, v1")
    a(f"v_lshl_add_u32 v{g.wr}, v6, 3, v5")
    a(f"v_add_u32 v{g.wr+1}, {2*g.STG}, v{g.wr}")
    a(f"s_mul_i32 s{s_t0}, s{s_wave}, {g.WI*64}")
    a(f"s_lshl_b32 s{s_t1}, s{s_n0}, 1")
    for i in range(g.WI):
        a(f"v_add_u32 v3, s{s_t0}, v1")
        if i:
            a(f"v_add_u32 v3, {i*64}, v3")
        assert g.CPR == 18
        a("v_mul_u32_u24 v4, 3641, v3")
        a("v_lshrrev_b32 v4, 16, v4")
        a("v_mul_u32_u24 v5, 18, v4")
        a("v_sub_u32 v5, v3, v5")
        a("v_and_b32 v6, 32, v4")
        a("v_and_b32 v7, 3, v4")
        a("v_add_u32 v6, v6, v7")
        a("v_bfe_u32 v7, v4, 2, 2")
        a("v_lshl_add_u32 v6, v7, 3, v6")
        a("v_bfe_u32 v7, v4, 4, 1")
        a("v_lshl_add_u32 v6, v7, 2, v6")
        a(f"v_mul_lo_u32 v6, v6, s{s_ldw}")
        a("v_lshl_add_u32 v6, v5, 4, v6")
        a(f"v_add_u32 v{g.wo+i}, s{s_t1}, v6")
        if (g.NW - 1) * g.WI + i >= g.CPR:
            a(f"v_mov_b32 v7, 0x80000000")
            a(f"v_cmp_le_u32 vcc, {g.CPR*64}, v3")
            a("s_nop 1")
            a(f"v_cndmask_b32 v{g.wo+i}, v{g.wo+i}, v7, vcc")
    a(f"s_mul_i32 s{s_lw}, s{s_wave}, {g.WI*1024}")
    a(f"s_lshl_b32 s{s_stepW}, s{s_ldw}, 6")
    for i in range(g.NT * g.TT * 4):
        a(f"v_mov_b32 v{g.acc+i}, 0")

def load_list(g, st):
    out = []
    for tt in range(g.TT):
        grp = []
        for s in range(2):
            r = g.X(st, s, tt)
            grp.append(f"buffer_load_dwordx4 v[{r}:{r+3}], v{g.xo+tt}, s[{sA}:{sA+3}], s{s_offA} offen offset:{s*64}")
        out.append("\n".join(grp))
    for i in range(g.WI):
        base = (st % NB) * g.STG + i * 1024
        if (g.NW - 1) * g.WI + i >= g.CPR:
            out.append(f"s_add_u32 s{s_t0}, s{s_lw}, {i*1024}\ns_cmp_ge_u32 s{s_t0}, {g.STG}\n"
                       f"s_cselect_b32 s{s_t1}, {(NB-1-(st%NB))*g.STG}, 0\ns_add_u32 s{s_t0}, s{s_t0}, s{s_t1}\n"
                       f"s_add_u32 m0, s{s_t0}, {(st % NB) * g.STG}\ns_nop 0\nbuffer_load_dwordx4 v{g.wo+i}, s[{sW}:{sW+3}], s{s_offW} offen lds")
        else:
            out.append(f"s_add_u32 m0, s{s_lw}, {base}\ns_nop 0\nbuffer_load_dwordx4 v{g.wo+i}, s[{sW}:{sW+3}], s{s_offW} offen lds")
    out.append(f"s_add_u32 s{s_offA}, s{s_offA}, 128\ns_add_u32 s{s_offW}, s{s_offW}, s{s_stepW}")
    return out

def gemm_main(a, g, swapped, nst, xform=None):
    NT, TT = g.NT, g.TT
    PD = NB - 1
    for st in range(min(PD, nst)):
        for d in load_list(g, st):
            a(d)
    for st in range(nst):
        ahead = min(nst - 1, st + PD - 1) - st
        a(f"s_waitcnt vmcnt({ahead * g.LPS})")
        a("s_barrier")
        loads = load_list(g, st + PD) if st + PD < nst else []
        if "nodma" in EXP: loads = []
        if xform:
            xform(a, g, st)
        reads = []
        for u in range(2 * NT):
            s, n = divmod(u, NT)
            for h in range(2):
                r = g.wf + (u % NT) * 4 + h * 2
                reads.append(f"ds_read_b64_tr_b16 v[{r}:{r+1}], v{g.wr + (st % NB)//2} offset:{(st % 2)*g.STG + (32*s+16*h)*g.RS + n*32}")
        D = 5
        issued = 0
        def issue(upto):
            nonlocal issued
            while issued < min(upto, len(reads)):
                a(reads[issued]); issued += 1
        issue(2 * D)
        for u in range(2 * NT):
            s, n = divmod(u, NT)
            cnt = issued - (2 * u + 2)
            assert 0 <= cnt <= 15
            a(f"s_waitcnt lgkmcnt({cnt})")
            for tt in range(TT):
                c = g.A(n, tt); wf = g.wf + (u % NT) * 4; xf = g.X(st, s, tt)
                if "nomfma" in EXP: continue
                if swapped:
                    a(f"v_mfma_f32_16x16x32_bf16 v[{c}:{c+3}], v[{xf}:{xf+3}], v[{wf}:{wf+3}], v[{c}:{c+3}]")
                else:
                    a(f"v_mfma_f32_16x16x32_bf16 v[{c}:{c+3}], v[{wf}:{wf+3}], v[{xf}:{xf+3}], v[{c}:{c+3}]")
            issue(2 * (u + D + 1))
            if u < len(loads):
                a(loads[u])
        for d in loads[2 * NT:]:
            a(d)
    a("s_nop 7")
    a("s_nop 1")
    if "noepi" in EXP: a("s_endpgm")

def gen_gemm1():
    a = Asm(); g = G(4, 2)
    a("s_cmp_ge_u32 s2, 704")
    a("s_cbranch_scc1 g1_done")
    a("s_cmp_ge_u32 s2, 512")
    a("s_cbranch_scc1 g1_qkv_setup")
    srd_load(a, sA, "ws"); srd_load(a, sW, "w1"); srd_load(a, sO, "ws"); srd_load(a, sB, "b1")
    a(f"s_lshr_b32 s{s_m0}, s2, 5")
    a(f"s_lshl_b32 s{s_m0}, s{s_m0}, 7")
    a(f"s_and_b32 s{s_n0}, s2, 31")
    a(f"s_mul_i32 s{s_n0}, s{s_n0}, 144")
    a(f"s_mov_b32 s{s_ldw}, 9216")
    a(f"s_mov_b32 s{s_mode}, 0")
    a("s_waitcnt lgkmcnt(0)")
    srd_fin(a, sA, 2048*576*2, W.Y); srd_fin(a, sW, SZ["w1"]); srd_fin(a, sO, 2048*4608*2, W.H); srd_fin(a, sB, SZ["b1"])
    a("s_branch g1_common")
    a.label("g1_qkv_setup")
    srd_load(a, sA, "x"); srd_load(a, sW, "wqkv"); srd_load(a, sO, "ws"); srd_load(a, sB, "ws")
    a(f"s_sub_u32 s{s_t0}, s2, 512")
    a(f"s_mul_i32 s{s_t1}, s{s_t0}, 5462")
    a(f"s_lshr_b32 s{s_t1}, s{s_t1}, 16")
    a(f"s_mul_i32 s{s_t2}, s{s_t1}, 12")
    a(f"s_sub_u32 s{s_t2}, s{s_t0}, s{s_t2}")
    a(f"s_lshl_b32 s{s_m0}, s{s_t1}, 7")
    a(f"s_mul_i32 s{s_n0}, s{s_t2}, 144")
    a(f"s_mov_b32 s{s_ldw}, 3456")
    a(f"s_lshr_b32 s{s_mode}, s{s_t2}, 2")
    a(f"s_add_u32 s{s_mode}, s{s_mode}, 1")
    a("s_waitcnt lgkmcnt(0)")
    srd_fin(a, sA, SZ["x"]); srd_fin(a, sW, SZ["wqkv"])
    srd_fin(a, sO, 2 * 32*2048*48, W.QP); srd_fin(a, sB, 32*18*2048*2, W.VT)
    a.label("g1_common")
    a(f"s_mov_b32 s{s_lda}, 1152")
    a(f"s_mov_b32 s{s_offA}, 0")
    a(f"s_mov_b32 s{s_offW}, 0")
    a(f"s_mov_b32 s{s_n}, 9")
    gemm_prologue(a, g)
    BI = g.free
    T = BI + 18
    a(f"s_cmp_eq_u32 s{s_mode}, 3")
    a("s_cbranch_scc1 g1_v")
    a(f"s_cmp_lg_u32 s{s_mode}, 0")
    a("s_cbranch_scc1 g1_nobias")
    a("v_lshrrev_b32 v3, 4, v1")
    a(f"s_lshl_b32 s{s_t0}, s{s_n0}, 1")
    a(f"v_lshl_add_u32 v3, v3, 3, s{s_t0}")
    for n in range(9):
        a(f"buffer_load_dwordx2 v[{BI+2*n}:{BI+2*n+1}], v3, s[{sB}:{sB+3}], 0 offen offset:{n*32}")
    a.label("g1_nobias")
    gemm_main(a, g, False, 9)
    a("v_and_b32 v1, 63, v0")
    a("v_and_b32 v2, 15, v1")
    a("v_lshrrev_b32 v3, 4, v1")
    a(f"s_lshl_b32 s{s_t0}, s{s_wave}, 5")
    a(f"s_add_u32 s{s_t0}, s{s_t0}, s{s_m0}")
    a(f"v_add_u32 v2, s{s_t0}, v2")
    a(f"s_cmp_lg_u32 s{s_mode}, 0")
    a("s_cbranch_scc1 g1_epi_qk")
    a("v_mul_u32_u24 v4, 9216, v2")
    a(f"s_lshl_b32 s{s_t0}, s{s_n0}, 1")
    a(f"v_lshl_add_u32 v5, v3, 3, s{s_t0}")
    a("v_add_u32 v4, v4, v5")
    a("v_and_b32 v8, 1, v3")
    a(f"v_mul_u32_u24 v9, {16*9216-8}, v8")
    a("v_add_u32 v9, v9, v4")
    a("v_mul_u32_u24 v8, 24, v8")
    a("v_add_u32 v4, v4, v8")
    a(f"v_add_u32 v5, {16*9216}, v4")
    c1 = -2.0 * 0.7978845608028654 * 1.4426950408889634
    a(f"v_mov_b32 v6, {f32(c1)}")
    a(f"v_mov_b32 v7, {f32(c1 * 0.044715)}")
    def gelu(n):
        b = T
        a(f"v_lshlrev_b32 v{b}, 16, v{BI+2*n}")
        a(f"v_and_b32 v{b+1}, 0xffff0000, v{BI+2*n}")
        a(f"v_lshlrev_b32 v{b+2}, 16, v{BI+2*n+1}")
        a(f"v_and_b32 v{b+3}, 0xffff0000, v{BI+2*n+1}")
        z = [g.A(n, tt) + r for tt in range(2) for r in range(4)]
        t = [T + 4 + i for i in range(8)]
        for i in range(8): a(f"v_add_f32 v{z[i]}, v{z[i]}, v{b + (i & 3)}")
        for i in range(8): a(f"v_mul_f32 v{t[i]}, v{z[i]}, v{z[i]}")
        for i in range(8): a(f"v_fma_f32 v{t[i]}, v{t[i]}, v7, v6")
        for i in range(8): a(f"v_mul_f32 v{t[i]}, v{t[i]}, v{z[i]}")
        for i in range(8): a(f"v_exp_f32 v{t[i]}, v{t[i]}")
        for i in range(8): a(f"v_add_f32 v{t[i]}, 1.0, v{t[i]}")
        for i in range(8): a(f"v_rcp_f32 v{t[i]}, v{t[i]}")
        for i in range(8): a(f"v_mul_f32 v{z[i]}, v{z[i]}, v{t[i]}")
    def pack_store(c, c2, vaddr, off, srd):
        a(f"v_cvt_pk_bf16_f32 v{c}, v{c}, v{c+1}")
        a(f"v_cvt_pk_bf16_f32 v{c+1}, v{c+2}, v{c+3}")
        a(f"v_cvt_pk_bf16_f32 v{c+2}, v{c2}, v{c2+1}")
        a(f"v_cvt_pk_bf16_f32 v{c+3}, v{c2+2}, v{c2+3}")
        a("s_nop 1")
        a(f"v_permlane16_swap_b32 v{c}, v{c+2}")
        a(f"v_permlane16_swap_b32 v{c+1}, v{c+3}")
        a("s_nop 0")
        a(f"buffer_store_dwordx4 v[{c}:{c+3}], v{vaddr}, s[{srd}:{srd+3}], 0 offen offset:{off}{SC}")
    for n in range(0, 8, 2):
        gelu(n); gelu(n + 1)
        for tt in range(2):
            pack_store(g.A(n, tt), g.A(n + 1, tt), 4 + tt, n * 32, sO)
    gelu(8)
    pack_store(g.A(8, 0), g.A(8, 1), 9, 8 * 32, sO)
    a("s_endpgm")
    a.label("g1_epi_qk")
    a(f"s_mov_b32 s{s_t1}, 1.0")
    a(f"s_cmp_eq_u32 s{s_mode}, 1")
    a(f"s_cselect_b32 s{s_t1}, {f32(18 ** -0.5 * 1.4426950408889634)}, s{s_t1}")
    a(f"s_cselect_b32 s{s_t2}, 0, {32*2048*48}")
    a(f"s_cselect_b32 s{s_t3}, 0, 576")
    a(f"s_sub_u32 s{s_t3}, s{s_n0}, s{s_t3}")
    a(f"s_mul_i32 s{s_t3}, s{s_t3}, 3641")
    a(f"s_lshr_b32 s{s_t3}, s{s_t3}, 16")
    a(f"s_mul_i32 s{s_t3}, s{s_t3}, 98304")
    a(f"s_add_u32 s{s_t2}, s{s_t2}, s{s_t3}")
    a("v_mul_u32_u24 v4, 48, v2")
    a(f"v_add_u32 v4, s{s_t2}, v4")
    a("v_lshlrev_b32 v5, 2, v3")
    for n in range(9):
        for p in range(2):
            a(f"v_add_u32 v6, {16*n + 2*p}, v5")
            a("v_mul_u32_u24 v7, 3641, v6")
            a("v_lshrrev_b32 v7, 16, v7")
            a("v_mul_u32_u24 v8, 18, v7")
            a("v_sub_u32 v6, v6, v8")
            a("v_mul_u32_u24 v7, 98304, v7")
            a("v_lshl_add_u32 v7, v6, 1, v7")
            a("v_add_u32 v7, v7, v4")
            for tt in range(2):
                c = g.A(n, tt) + 2 * p
                a(f"v_mul_f32 v{c}, s{s_t1}, v{c}")
                a(f"v_mul_f32 v{c+1}, s{s_t1}, v{c+1}")
                a(f"v_cvt_pk_bf16_f32 v{c}, v{c}, v{c+1}")
                a(f"buffer_store_dword v{c}, v7, s[{sO}:{sO+3}], 0 offen offset:{tt*768}")
    a("v_and_b32 v4, 127, v0")
    a(f"v_add_u32 v4, s{s_m0}, v4")
    a("v_mul_u32_u24 v4, 48, v4")
    a("v_lshrrev_b32 v5, 7, v0")
    a(f"v_mul_u32_u24 v5, {4*98304}, v5")
    a("v_add_u32 v4, v4, v5")
    a(f"v_add_u32 v4, s{s_t2}, v4")
    a("v_mov_b32 v8, 0"); a("v_mov_b32 v9, 0"); a("v_mov_b32 v10, 0")
    for hh in range(4):
        a(f"buffer_store_dwordx3 v[8:10], v4, s[{sO}:{sO+3}], 0 offen offset:36")
        if hh < 3:
            a("v_add_u32 v4, 0x18000, v4")
    a("s_endpgm")
    a.label("g1_v")
    gemm_main(a, g, True, 9)
    a("v_and_b32 v1, 63, v0")
    a("v_and_b32 v2, 15, v1")
    a("v_lshrrev_b32 v3, 4, v1")
    a(f"s_sub_u32 s{s_t0}, s{s_n0}, 1152")
    a(f"v_add_u32 v2, s{s_t0}, v2")
    a("v_lshlrev_b32 v2, 12, v2")
    a("v_and_b32 v4, 1, v3")
    a("v_lshlrev_b32 v4, 3, v4")
    a("v_lshrrev_b32 v5, 1, v3")
    a("v_lshl_add_u32 v4, v5, 2, v4")
    a(f"s_lshl_b32 s{s_t0}, s{s_wave}, 5")
    a(f"s_add_u32 s{s_t0}, s{s_t0}, s{s_m0}")
    a(f"v_add_u32 v4, s{s_t0}, v4")
    a("v_lshl_add_u32 v2, v4, 1, v2")
    for n in range(9):
        for tt in range(2):
            c = g.A(n, tt)
            a(f"v_cvt_pk_bf16_f32 v{c}, v{c}, v{c+1}")
            a(f"v_cvt_pk_bf16_f32 v{c+1}, v{c+2}, v{c+3}")
            a(f"buffer_store_dwordx2 v[{c}:{c+1}], v2, s[{sB}:{sB+3}], 0 offen offset:{tt*32}")
        if n < 8:
            a("v_add_u32 v2, 0x10000, v2")
    a.label("g1_done")
    a("s_endpgm")
    return a.text(), T + 12, g.LDS

def gen_fc2():
    a = Asm(); g = G(4, 2)
    a("s_cmp_ge_u32 s2, 256")
    a("s_cbranch_scc1 f2_done")
    srd_load(a, sA, "ws"); srd_load(a, sW, "w2"); srd_load(a, sO, "ws")
    a(f"s_and_b32 s{s_mode}, s2, 3")
    a(f"s_bfe_u32 s{s_m0}, s2, 0x10002")
    a(f"s_lshl_b32 s{s_m0}, s{s_m0}, 3")
    a(f"s_lshr_b32 s{s_t0}, s2, 5")
    a(f"s_add_u32 s{s_m0}, s{s_m0}, s{s_t0}")
    a(f"s_lshl_b32 s{s_m0}, s{s_m0}, 7")
    a(f"s_bfe_u32 s{s_n0}, s2, 0x20003")
    a(f"s_mul_i32 s{s_n0}, s{s_n0}, 144")
    a(f"s_mul_i32 s{s_offA}, s{s_mode}, {1152*2}")
    a(f"s_mul_i32 s{s_offW}, s{s_mode}, {1152*1152}")
    a(f"s_mov_b32 s{s_lda}, 9216")
    a(f"s_mov_b32 s{s_ldw}, 1152")
    a(f"s_mov_b32 s{s_n}, 18")
    a("s_waitcnt lgkmcnt(0)")
    srd_fin(a, sA, 2048*4608*2, W.H); srd_fin(a, sW, SZ["w2"]); srd_fin(a, sO, 4*2048*576*4, W.P)
    gemm_prologue(a, g)
    gemm_main(a, g, False, 18)
    a("v_and_b32 v1, 63, v0")
    a("v_and_b32 v2, 15, v1")
    a("v_lshrrev_b32 v3, 4, v1")
    a(f"s_lshl_b32 s{s_t0}, s{s_wave}, 5")
    a(f"s_add_u32 s{s_t0}, s{s_t0}, s{s_m0}")
    a(f"s_lshl_b32 s{s_t1}, s{s_mode}, 11")
    a(f"s_add_u32 s{s_t0}, s{s_t0}, s{s_t1}")
    a(f"v_add_u32 v2, s{s_t0}, v2")
    a("v_mul_u32_u24 v4, 2304, v2")
    a(f"s_lshl_b32 s{s_t0}, s{s_n0}, 2")
    a(f"v_lshl_add_u32 v5, v3, 4, s{s_t0}")
    a("v_add_u32 v4, v4, v5")
    a(f"v_add_u32 v5, {16*2304}, v4")
    for n in range(9):
        for tt in range(2):
            c = g.A(n, tt)
            a(f"buffer_store_dwordx4 v[{c}:{c+3}], v{4+tt}, s[{sO}:{sO+3}], 0 offen offset:{n*64}{SC}")
    a.label("f2_done")
    a("s_endpgm")
    return a.text(), g.free + 4, g.LDS

def gen_fin():
    a = Asm(); g = G(2, 1)
    a("s_cmp_ge_u32 s2, 256")
    a("s_cbranch_scc1 fn_done")
    srd_load(a, sA, "ws"); srd_load(a, sW, "wo"); srd_load(a, sO, "out"); srd_load(a, sB, "b2"); srd_load(a, sC, "ws")
    a("s_load_dwordx2 s[40:41], s[0:1], 88")
    a(f"s_lshr_b32 s{s_m0}, s2, 2")
    a(f"s_lshl_b32 s{s_m0}, s{s_m0}, 5")
    a(f"s_and_b32 s{s_n0}, s2, 3")
    a(f"s_mul_i32 s{s_n0}, s{s_n0}, 144")
    a(f"s_mov_b32 s{s_offA}, 0")
    a(f"s_mov_b32 s{s_offW}, 0")
    a(f"s_mov_b32 s{s_lda}, 1152")
    a(f"s_mov_b32 s{s_ldw}, 1152")
    a(f"s_mov_b32 s{s_n}, 9")
    a("s_waitcnt lgkmcnt(0)")
    srd_fin(a, sA, 2048*576*2, W.O); srd_fin(a, sW, SZ["wo"]); srd_fin(a, sO, SZ["out"]); srd_fin(a, sB, SZ["b2"])
    srd_fin(a, sC, 4*2048*576*4, W.P); srd_fin(a, 40, 2048*4, W.G)
    gemm_prologue(a, g)
    BI = g.free
    GG = BI + 18
    T = GG + 2
    a("v_and_b32 v2, 15, v1")
    a("v_lshrrev_b32 v3, 4, v1")
    a(f"s_lshl_b32 s{s_t0}, s{s_wave}, 4")
    a(f"s_add_u32 s{s_t0}, s{s_t0}, s{s_m0}")
    a(f"v_add_u32 v2, s{s_t0}, v2")
    a(f"s_lshl_b32 s{s_t0}, s{s_n0}, 1")
    a(f"v_lshl_add_u32 v4, v3, 3, s{s_t0}")
    for n in range(9):
        a(f"buffer_load_dwordx2 v[{BI+2*n}:{BI+2*n+1}], v4, s[{sB}:{sB+3}], 0 offen offset:{n*32}")
    a("v_lshlrev_b32 v5, 2, v2")
    a(f"buffer_load_dword v{GG}, v5, s[40:43], 0 offen")
    a("v_mul_u32_u24 v5, 2304, v2")
    a(f"s_lshl_b32 s{s_t0}, s{s_n0}, 2")
    a(f"v_lshl_add_u32 v6, v3, 4, s{s_t0}")
    a("v_add_u32 v5, v5, v6")
    for sp in range(4):
        for n in range(9):
            r = sp * 36 + n * 4
            a(f"buffer_load_dwordx4 a[{r}:{r+3}], v5, s[{sC}:{sC+3}], 0 offen offset:{n*64}")
        if sp < 3:
            a(f"v_add_u32 v5, {2048*2304}, v5")
    a("v_mul_u32_u24 v8, 1152, v2")
    a("v_add_u32 v8, v8, v4")
    gemm_main(a, g, False, 9)
    a("s_waitcnt vmcnt(0)")
    a(f"v_sub_f32 v{GG+1}, 1.0, v{GG}")
    for n in range(9):
        b = T
        a(f"v_lshlrev_b32 v{b}, 16, v{BI+2*n}")
        a(f"v_and_b32 v{b+1}, 0xffff0000, v{BI+2*n}")
        a(f"v_lshlrev_b32 v{b+2}, 16, v{BI+2*n+1}")
        a(f"v_and_b32 v{b+3}, 0xffff0000, v{BI+2*n+1}")
        c = g.A(n, 0)
        for sp in range(4):
            for r in range(4):
                a(f"v_accvgpr_read_b32 v{T+4+sp*4+r}, a{sp*36+n*4+r}")
        for r in range(4):
            p = T + 4 + r
            a(f"v_add_f32 v{p}, v{p}, v{p+4}")
            a(f"v_add_f32 v{p+8}, v{p+8}, v{p+12}")
            a(f"v_add_f32 v{p}, v{p}, v{p+8}")
            a(f"v_add_f32 v{p}, v{p}, v{b+r}")
            a(f"v_mul_f32 v{p}, v{p}, v{GG+1}")
            a(f"v_fmac_f32 v{p}, v{c+r}, v{GG}")
        p = T + 4
        a(f"v_cvt_pk_bf16_f32 v{c}, v{p}, v{p+1}")
        a(f"v_cvt_pk_bf16_f32 v{c+1}, v{p+2}, v{p+3}")
        a(f"buffer_store_dwordx2 v[{c}:{c+1}], v8, s[{sO}:{sO+3}], 0 offen offset:{n*32}")
    a.label("fn_done")
    a("s_endpgm")
    return a.text(), (T + 20, 144), g.LDS

def gen_attn():
    a = Asm()
    KB = 24576; VOFF = KB; BUF1 = 0x10000
    LDS = BUF1 + KB + 19 * 1024
    sK, sV, sQ, sOo = 4, 8, 12, 16
    s_h, s_q0, s_w, s_koff, s_voff, s_mk, s_mv, s_c, s_thr = 24, 25, 26, 27, 28, 29, 30, 31, 32
    S = [16, 32]; NM = 48; O = 64; Q0 = 80; Q1 = 84; PP = [88, 96]
    KF = [104, 112]; VFF = [120, 128]
    vK0, vK1 = 136, 137; vV = 138
    dK = 146; dV = 147
    t0, t1, t2, t3 = 150, 151, 152, 153
    vmx = 154
    NV = 156
    P = PP[0]
    a("s_cmp_ge_u32 s2, 256")
    a("s_cbranch_scc1 at_done")
    srd_load(a, sK, "ws"); srd_load(a, sV, "ws"); srd_load(a, sQ, "ws"); srd_load(a, sOo, "ws")
    a(f"s_and_b32 s{s_h}, s2, 31")
    a(f"s_lshr_b32 s{s_q0}, s2, 5")
    a(f"s_lshl_b32 s{s_q0}, s{s_q0}, 8")
    a("v_and_b32 v1, 63, v0")
    a("v_lshrrev_b32 v2, 6, v0")
    a("s_nop 0")
    a(f"v_readfirstlane_b32 s{s_w}, v2")
    a("v_and_b32 v2, 31, v1")
    a("v_lshrrev_b32 v3, 5, v1")
    a("s_waitcnt lgkmcnt(0)")
    srd_fin(a, sK, 32*2048*48, W.KP); srd_fin(a, sV, 32*18*4096, W.VT); srd_fin(a, sQ, 32*2048*48, W.QP); srd_fin(a, sOo, 2048*576*2, W.O)
    a(f"s_lshl_b32 s{s_c}, s{s_h}, 11")
    a(f"s_add_u32 s{s_c}, s{s_c}, s{s_q0}")
    a(f"s_lshl_b32 s33, s{s_w}, 5")
    a(f"s_add_u32 s{s_c}, s{s_c}, s33")
    a(f"v_add_u32 v4, s{s_c}, v2")
    a("v_mul_u32_u24 v4, 48, v4")
    a("v_lshl_add_u32 v5, v3, 4, v4")
    a(f"buffer_load_dwordx4 v[{Q0}:{Q0+3}], v5, s[{sQ}:{sQ+3}], 0 offen")
    a(f"buffer_load_dwordx4 v[{Q1}:{Q1+3}], v4, s[{sQ}:{sQ+3}], 0 offen offset:32")
    a(f"s_mul_i32 s33, s{s_w}, 3072")
    a(f"v_lshlrev_b32 v{dK}, 4, v1")
    a(f"v_add_u32 v{dK}, s33, v{dK}")
    a(f"s_mul_i32 s{s_koff}, s{s_h}, 98304")
    a(f"s_mov_b32 s{s_voff}, 0")
    a(f"s_mul_i32 s34, s{s_h}, 18")
    for i in range(3):
        if i < 2:
            a(f"s_lshl_b32 s35, s{s_w}, 1")
            if i: a("s_add_u32 s35, s35, 1")
        else:
            a(f"s_add_u32 s35, s{s_w}, 16")
        a("s_and_b32 s36, s35, 15")
        a(f"v_xor_b32 v4, s36, v1")
        a("v_lshlrev_b32 v4, 4, v4")
        a("s_add_u32 s36, s35, s34")
        a("s_lshl_b32 s36, s36, 12")
        a(f"v_add_u32 v{dV+i}, s36, v4")
    a(f"s_mul_i32 s{s_mk}, s{s_w}, 3072")
    a(f"s_lshl_b32 s{s_mv}, s{s_w}, 11")
    a(f"s_add_u32 s{s_mv}, s{s_mv}, {VOFF}")
    def dma(toggle):
        a(f"s_mov_b32 m0, s{s_mk}")
        a("s_nop 0")
        for i in range(3):
            a(f"buffer_load_dwordx4 v{dK}, s[{sK}:{sK+3}], s{s_koff} offen offset:{i*1024} lds")
        a(f"s_mov_b32 m0, s{s_mv}")
        a("s_nop 0")
        a(f"buffer_load_dwordx4 v{dV}, s[{sV}:{sV+3}], s{s_voff} offen lds")
        a(f"s_add_u32 m0, s{s_mv}, 1024")
        a("s_nop 0")
        a(f"buffer_load_dwordx4 v{dV+1}, s[{sV}:{sV+3}], s{s_voff} offen lds")
        a(f"s_cmp_ge_u32 s{s_w}, 2")
        a(f"s_cbranch_scc1 at_dskip{toggle}")
        a(f"s_lshl_b32 s33, s{s_w}, 10")
        a(f"s_sub_u32 s33, s{s_mv}, s33")
        a(f"s_add_u32 m0, s33, {16*1024}")
        a("s_nop 0")
        a(f"buffer_load_dwordx4 v{dV+2}, s[{sV}:{sV+3}], s{s_voff} offen lds")
        a.label(f"at_dskip{toggle}")
        a(f"s_add_u32 s{s_koff}, s{s_koff}, {KB}")
        a(f"s_add_u32 s{s_voff}, s{s_voff}, 1024")
        a(f"s_xor_b32 s{s_mk}, s{s_mk}, {BUF1}")
        a(f"s_xor_b32 s{s_mv}, s{s_mv}, {BUF1}")
    dma("a")
    dma("b")
    a("v_lshlrev_b32 v4, 2, v0")
    a("v_and_b32 v5, 1023, v4")
    a("v_lshrrev_b32 v6, 10, v4")
    a("v_lshlrev_b32 v6, 16, v6")
    a("v_add_u32 v5, v5, v6")
    a(f"v_add_u32 v5, {VOFF + 18*1024}, v5")
    a("v_mov_b32 v6, 0x3f803f80")
    a("ds_write_b32 v5, v6")
    a(f"v_mul_u32_u24 v{vK1}, 48, v2")
    a(f"v_lshl_add_u32 v{vK0}, v3, 4, v{vK1}")
    a(f"v_add_u32 v{vK1}, 32, v{vK1}")
    a("v_min_u32 v4, 18, v2")
    a("v_and_b32 v5, 15, v4")
    a("v_lshlrev_b32 v4, 10, v4")
    a(f"v_add_u32 v4, {VOFF}, v4")
    for i in range(8):
        a(f"v_add_u32 v6, {2*i}, v3")
        a("v_xor_b32 v6, v6, v5")
        a(f"v_lshl_add_u32 v{vV+i}, v6, 4, v4")
    for r in range(16):
        a(f"v_mov_b32 v{NM+r}, 0")
        a(f"v_mov_b32 v{O+r}, 0")
        a(f"v_mov_b32 v{PP[0]+r}, 0")
        a(f"v_mov_b32 v{VFF[0]+r}, 0")
    a(f"s_mov_b32 s{s_thr}, {f32(10.0)}")
    a("s_waitcnt vmcnt(0) lgkmcnt(0)")
    a("v_cmp_lt_u32 vcc, 31, v1")
    a("v_mov_b32 v4, 0")
    a("s_nop 1")
    for r in range(4):
        a(f"v_cndmask_b32 v{Q1+r}, v{Q1+r}, v4, vcc")
    a("s_barrier")
    def kread(tile, kf):
        a(f"ds_read_b128 v[{kf}:{kf+3}], v{vK0} offset:{tile*1536}")
        a(f"ds_read_b128 v[{kf+4}:{kf+7}], v{vK1} offset:{tile*1536}")
    def qk(kf, s):
        a(f"v_mfma_f32_32x32x16_bf16 v[{s}:{s+15}], v[{kf}:{kf+3}], v[{Q0}:{Q0+3}], v[{NM}:{NM+15}]")
        a(f"v_mfma_f32_32x32x16_bf16 v[{s}:{s+15}], v[{kf+4}:{kf+7}], v[{Q1}:{Q1+3}], v[{s}:{s+15}]")
    def maxtree(s):
        a(f"v_max3_f32 v{t0}, v{s}, v{s+1}, v{s+2}")
        a(f"v_max3_f32 v{t1}, v{s+3}, v{s+4}, v{s+5}")
        a(f"v_max3_f32 v{t2}, v{s+6}, v{s+7}, v{s+8}")
        a(f"v_max3_f32 v{t3}, v{s+9}, v{s+10}, v{s+11}")
        a(f"v_max3_f32 v{t0}, v{t0}, v{s+12}, v{s+13}")
        a(f"v_max3_f32 v{t1}, v{t1}, v{s+14}, v{s+15}")
        a(f"v_max3_f32 v{t0}, v{t0}, v{t1}, v{t2}")
        a(f"v_max_f32 v{vmx}, v{t0}, v{t3}")
    def xhalf_max():
        a(f"v_mov_b32 v{t0}, v{vmx}")
        a("s_nop 1")
        a(f"v_permlane32_swap_b32 v{t0}, v{vmx}")
        a("s_nop 1")
        a(f"v_max_f32 v{vmx}, v{vmx}, v{t0}")
    kread(0, KF[0]); kread(1, KF[1])
    a("s_waitcnt lgkmcnt(2)")
    qk(KF[0], S[0])
    a("s_nop 15"); a("s_nop 3")
    maxtree(S[0])
    xhalf_max()
    a(f"v_sub_f32 v{t0}, 0, v{vmx}")
    for r in range(16):
        a(f"v_mov_b32 v{NM+r}, v{t0}")
    a("s_nop 1")
    qk(KF[0], S[0])
    a("s_nop 15")
    a(f"s_mov_b32 s{s_c}, 0")
    if "stamp" in EXP:
        a("s_memtime s[40:41]")
        a("s_memrealtime s[42:43]")
        a("s_waitcnt lgkmcnt(0)")
    a.label("at_chunk")
    def pv(j, vf, p):
        a(f"v_mfma_f32_32x32x16_bf16 v[{O}:{O+15}], v[{vf+4*j}:{vf+4*j+3}], v[{p+4*j}:{p+4*j+3}], v[{O}:{O+15}]")
    for t in range(16):
        cur, nxt = S[t & 1], S[(t + 1) & 1]
        Pc, Pp = PP[t & 1], PP[(t + 1) & 1]
        Vc, Vp = VFF[t & 1], VFF[(t + 1) & 1]
        if t == 14:
            a(f"s_cmp_eq_u32 s{s_c}, 3")
            a("s_cbranch_scc1 at_nb14")
            a("s_waitcnt vmcnt(0)")
            a("s_barrier")
            a.label("at_nb14")
            a(f"v_xor_b32 v{vK0}, {BUF1}, v{vK0}")
            a(f"v_xor_b32 v{vK1}, {BUF1}, v{vK1}")
        if t == 1:
            a(f"s_cmp_eq_u32 s{s_c}, 0")
            a("s_cbranch_scc1 at_nb1")
            a(f"s_cmp_eq_u32 s{s_c}, 3")
            a("s_cbranch_scc1 at_nb1")
            a("s_barrier")
            dma("c")
            a.label("at_nb1")
        i0_ = (t & 3) * 2
        a(f"ds_read_b128 v[{Vc}:{Vc+3}], v{vV+i0_} offset:{(t>>2)*256}")
        a(f"ds_read_b128 v[{Vc+4}:{Vc+7}], v{vV+i0_+1} offset:{(t>>2)*256}")
        kread((t + 2) & 15, KF[t & 1])
        maxtree(cur)
        a(f"v_cmp_lt_f32 vcc, s{s_thr}, v{vmx}")
        a(f"s_cbranch_vccnz at_slow{t}")
        a.label(f"at_back{t}")
        a("s_waitcnt lgkmcnt(4)")
        kf = KF[(t + 1) & 1]
        def exps(r0):
            for r in range(r0, r0 + 4):
                a(f"v_exp_f32 v{cur+r}, v{cur+r}")
        pv(0, Vp, Pp)
        exps(0)
        a(f"v_mfma_f32_32x32x16_bf16 v[{nxt}:{nxt+15}], v[{kf}:{kf+3}], v[{Q0}:{Q0+3}], v[{NM}:{NM+15}]")
        exps(4)
        pv(1, Vp, Pp)
        a(f"v_cvt_pk_bf16_f32 v{Pc}, v{cur}, v{cur+1}")
        a(f"v_cvt_pk_bf16_f32 v{Pc+1}, v{cur+2}, v{cur+3}")
        exps(8)
        a(f"v_mfma_f32_32x32x16_bf16 v[{nxt}:{nxt+15}], v[{kf+4}:{kf+7}], v[{Q1}:{Q1+3}], v[{nxt}:{nxt+15}]")
        a(f"v_cvt_pk_bf16_f32 v{Pc+2}, v{cur+4}, v{cur+5}")
        a(f"v_cvt_pk_bf16_f32 v{Pc+3}, v{cur+6}, v{cur+7}")
        exps(12)
        for r in range(4, 8):
            a(f"v_cvt_pk_bf16_f32 v{Pc+r}, v{cur+2*r}, v{cur+2*r+1}")
        a("s_nop 1")
        L = a.late
        L.append(f"at_slow{t}:")
        def l(s_): L.append("    " + s_)
        l("s_waitcnt lgkmcnt(0)")
        l(f"v_mfma_f32_32x32x16_bf16 v[{O}:{O+15}], v[{Vp}:{Vp+3}], v[{Pp}:{Pp+3}], v[{O}:{O+15}]")
        l(f"v_mfma_f32_32x32x16_bf16 v[{O}:{O+15}], v[{Vp+4}:{Vp+7}], v[{Pp+4}:{Pp+7}], v[{O}:{O+15}]")
        l(f"v_mov_b32 v{t0}, v{vmx}")
        l("s_nop 1")
        l(f"v_permlane32_swap_b32 v{t0}, v{vmx}")
        l("s_nop 1")
        l(f"v_max_f32 v{vmx}, v{vmx}, v{t0}")
        l(f"v_max_f32 v{vmx}, 0, v{vmx}")
        l(f"v_sub_f32 v{t1}, 0, v{vmx}")
        l(f"v_exp_f32 v{t1}, v{t1}")
        l("s_nop 15"); l("s_nop 15")
        for r in range(8):
            l(f"v_mov_b32 v{Pp+r}, 0")
        for r in range(16):
            l(f"v_sub_f32 v{cur+r}, v{cur+r}, v{vmx}")
            l(f"v_sub_f32 v{NM+r}, v{NM+r}, v{vmx}")
            l(f"v_mul_f32 v{O+r}, v{O+r}, v{t1}")
        l("s_nop 1")
        l(f"s_branch at_back{t}")
    for i in range(8):
        a(f"v_xor_b32 v{vV+i}, {BUF1}, v{vV+i}")
    a(f"s_add_u32 s{s_c}, s{s_c}, 1")
    a(f"s_cmp_lt_u32 s{s_c}, 4")
    a("s_cbranch_scc1 at_chunk")
    a("s_waitcnt lgkmcnt(0)")
    pv(0, VFF[1], PP[1])
    pv(1, VFF[1], PP[1])
    if "stamp" in EXP:
        a("s_memtime s[44:45]")
        a("s_memrealtime s[46:47]")
        a("s_load_dwordx2 s[48:49], s[0:1], 80")
        a("s_waitcnt lgkmcnt(0)")
        a("s_mov_b32 s50, 256")
        a("s_mov_b32 s51, 0x20000")
        a("s_sub_u32 s44, s44, s40")
        a("s_sub_u32 s46, s46, s42")
        a("v_mov_b32 v4, s44")
        a("v_mov_b32 v5, s46")
        a("v_lshlrev_b32 v6, 3, v0")
        a("s_cmp_lg_u32 s2, 5")
        a("s_cbranch_scc1 at_nost")
        a("v_cmp_eq_u32 vcc, 0, v1")
        a("s_and_saveexec_b64 s[52:53], vcc")
        a("buffer_store_dwordx2 v[4:5], v6, s[48:51], 0 offen")
        a("s_mov_b64 exec, s[52:53]")
        a.label("at_nost")
    a("s_nop 15"); a("s_nop 3")
    a(f"v_rcp_f32 v{t0}, v{O+10}")
    a("s_nop 1")
    a(f"v_mov_b32 v{t1}, v{t0}")
    a("s_nop 1")
    a(f"v_permlane32_swap_b32 v{t1}, v{t0}")
    a("s_nop 1")
    for r in range(10):
        a(f"v_mul_f32 v{O+r}, v{O+r}, v{t1}")
    for r in range(5):
        a(f"v_cvt_pk_bf16_f32 v{P+r}, v{O+2*r}, v{O+2*r+1}")
    a(f"s_lshl_b32 s33, s{s_w}, 5")
    a(f"s_add_u32 s33, s33, s{s_q0}")
    a("v_and_b32 v2, 31, v0")
    a("v_bfe_u32 v3, v0, 5, 1")
    a("v_add_u32 v4, s33, v2")
    a("v_mul_u32_u24 v4, 1152, v4")
    a(f"s_mul_i32 s33, s{s_h}, 36")
    a("v_lshl_add_u32 v4, v3, 3, v4")
    a("v_add_u32 v4, s33, v4")
    a(f"buffer_store_dwordx2 v[{P}:{P+1}], v4, s[{sOo}:{sOo+3}], 0 offen")
    a(f"buffer_store_dwordx2 v[{P+2}:{P+3}], v4, s[{sOo}:{sOo+3}], 0 offen offset:16")
    a("s_mov_b64 exec, 0xffffffff")
    a(f"buffer_store_dword v{P+4}, v4, s[{sOo}:{sOo+3}], 0 offen offset:32")
    a.label("at_done")
    a("s_endpgm")
    return a.text() + "\n".join(a.late) + "\n", NV, LDS

def main():
    pre, pre_v = gen_pre()
    g1, g1_v, g1_l = gen_gemm1()
    at, at_v, at_l = gen_attn()
    f2, f2_v, f2_l = gen_fc2()
    fn, fn_v, fn_l = gen_fin()
    ks = [("pre_kernel", pre, pre_v, 0, 256, 64), ("gemm1_kernel", g1, g1_v, g1_l, 704, 256),
          ("attn_kernel", at, at_v, at_l, 256, 512), ("fc2_kernel", f2, f2_v, f2_l, 256, 256),
          ("fin_kernel", fn, fn_v, fn_l, 256, 128)]
    o = "; gated_mix: softmax MHA + mixer channel MLP, generated by dev/gen.py\n"
    for n, _, _, l, gr, bl in ks:
        o += f"; @launch kernel={n} grid=({gr},1,1) block=({bl},1,1) lds={l}\n"
    o += '.amdgcn_target "amdgcn-amd-amdhsa--gfx950"\n.text\n'
    for n, t, *_ in ks:
        o += kernel_header(n) + t
    o += '.section .rodata,"a"\n'
    for n, _, v, *_ in ks:
        o += kernel_desc(n, v)
    path = sys.argv[1] if len(sys.argv) > 1 else "gated_mix__softmax_full_mha__mixer_channel_mlp__prompt.s"
    open(path, "w").write(o)
    print("wrote", path, len(o), "bytes; vgprs", [(k[0], k[2], k[3]) for k in ks])

if __name__ == '__main__':
    main()
```

```python
import sys, os
import wsmap as W
from gen import Asm, f32, srd_load, srd_fin, kernel_header, kernel_desc, KA, SZ, EXP, SC
import gen as G2

XR = 0; XS = 32768
W1R = 3 * XS; W1S = 9216
WQR = W1R + 4 * W1S; WQS = 5120
PAD = WQR + 4 * WQS
GWO = PAD + 1024
ONE = GWO + 2048
BIO = ONE + 2048
L1_LDS = BIO + 1024
STAT = 0; CS = 2048; STG = 4096
RS = 288; RQ = 160
DD = int(os.environ.get("DD", "4"))
NT = 7

def gen_l1():
    a = Asm()
    sX, sW1, sP2, sH, sQK, sVT, sG, sGW, sB1, sWq = 4, 8, 12, 16, 20, 24, 28, 32, 36, 40
    (s_w, s_m0, s_n1, s_nq, s_mode, offX, offW1, offP2, stepP2, lx, lw1, t0, t1, t2, t3, s_rg, s_ty) = range(44, 61)
    lp2 = 64
    sTT = 68
    LDW1, LDWQ = 9216, 3456
    R = DD + 2
    acc = 16
    xf = acc + 112
    wf = xf + 32
    gwf = wf + R * 4
    ded = gwf + 8
    sd = ded + 8
    cs = sd + 8
    one = cs + 8
    q2 = one + 4
    xo = q2 + 8
    wo1 = xo + 4; wo2 = wo1 + 1
    xr = wo2 + 1
    w1r = xr + 4; dr = w1r + 1; gr = dr + 1; wqr = gr + 1
    NV = wqr + 1
    assert NV <= 256, NV
    def A(i, tt): return acc + (i * 4 + tt) * 4
    def stamp(i):
        if "stamp" in EXP:
            a(f"s_memtime s[{72+2*i}:{73+2*i}]")
            a("s_waitcnt lgkmcnt(0)")
    def stamp_out():
        if "stamp" not in EXP: return
        a("s_waitcnt vmcnt(0)")
        stamp(6)
        a("s_load_dwordx2 s[88:89], s[0:1], 80")
        a("s_waitcnt lgkmcnt(0)")
        a("s_mov_b32 s90, 256"); a("s_mov_b32 s91, 0x20000")
        lbl = f"l1_nst{len(a.lines)}"
        a(f"s_cmp_lg_u32 s2, {int(os.environ.get('SWG', '5'))}")
        a(f"s_cbranch_scc1 {lbl}")
        a(f"s_lshl_b32 s3, s{s_w}, 5")
        a("v_mov_b32 v3, s3")
        a("s_mov_b64 exec, 1")
        for i in range(7):
            a(f"v_mov_b32 v4, s{72+2*i}")
            a(f"buffer_store_dword v4, v3, s[88:91], 0 offen offset:{4*i}")
        a("s_mov_b64 exec, -1")
        a.label(lbl)
    a("s_cmp_ge_u32 s2, 256")
    a("s_cbranch_scc1 l1_done")
    for s_, nm in ((sX, "x"), (sW1, "w1"), (sWq, "wqkv"), (sGW, "gw"), (sB1, "b1"), (sH, "ws"), (sQK, "ws"), (sVT, "ws"), (sG, "ws")):
        srd_load(a, s_, nm)
    a(f"s_lshr_b32 s{s_m0}, s2, 5")
    a(f"s_lshl_b32 s{s_m0}, s{s_m0}, 8")
    a(f"s_and_b32 s{t0}, s2, 31")
    a(f"s_mul_i32 s{s_n1}, s{t0}, 144")
    a(f"s_lshr_b32 s{s_mode}, s{t0}, 3")
    a(f"s_and_b32 s{t1}, s{t0}, 7")
    a(f"s_mul_i32 s{s_nq}, s{t1}, 72")
    a(f"s_add_u32 s{s_mode}, s{s_mode}, 1")
    a(f"s_and_b32 s{s_mode}, s{s_mode}, 3")
    for o in (offX, offW1, offP2):
        a(f"s_mov_b32 s{o}, 0")
    for tt in range(4):
        a(f"s_mov_b32 s{sTT+tt}, {tt*16*9216}")
    a("v_and_b32 v1, 63, v0")
    a("v_lshrrev_b32 v2, 6, v0")
    a("s_nop 0")
    a(f"v_readfirstlane_b32 s{s_w}, v2")
    a("v_lshrrev_b32 v3, 3, v1")
    a("v_and_b32 v4, 7, v1")
    a("v_xor_b32 v4, v4, v3")
    a("v_lshlrev_b32 v4, 4, v4")
    a(f"s_lshl_b32 s{t0}, s{s_w}, 5")
    a(f"s_add_u32 s{t0}, s{t0}, s{s_m0}")
    a(f"v_add_u32 v5, s{t0}, v3")
    a("v_mul_u32_u24 v5, 1152, v5")
    a(f"v_add_u32 v{xo}, v5, v4")
    for i in range(1, 4):
        a(f"v_add_u32 v{xo+i}, {8*1152}, v{xo+i-1}")
    a(f"s_lshl_b32 s{lx}, s{s_w}, 12")
    a(f"s_lshl_b32 s{lw1}, s{s_w}, 10")
    a(f"s_add_u32 s{lw1}, s{lw1}, {W1R}")
    a(f"s_and_b32 s{s_rg}, s{s_w}, 3")
    a(f"s_lshr_b32 s{s_ty}, s{s_w}, 2")
    def xloads(stg):
        sl = stg % 3
        out = [f"s_add_u32 m0, s{lx}, {sl*XS + i*1024}\ns_nop 0\nbuffer_load_dwordx4 v{xo+i}, s[{sX}:{sX+3}], s{offX} offen lds" for i in range(4)]
        out[-1] += f"\ns_add_u32 s{offX}, s{offX}, 128"
        return out
    def wloads(hs):
        q = hs % 4
        return [f"s_add_u32 m0, s{lw1}, {q*W1S}\ns_nop 0\nbuffer_load_dwordx4 v{wo1}, s[{sW1}:{sW1+3}], s{offW1} offen lds\ns_add_u32 s{offW1}, s{offW1}, {32*LDW1}",
                f"s_mov_b32 m0, s{lp2+q}\ns_nop 0\nbuffer_load_dwordx4 v{wo2}, s[{sP2}:{sP2+3}], s{offP2} offen lds\ns_add_u32 s{offP2}, s{offP2}, s{stepP2}"]
    def unperm(rho, dst, tmp):
        a(f"v_and_b32 v{dst}, 3, v{rho}")
        a(f"v_bfe_u32 v{tmp}, v{rho}, 2, 2")
        a(f"v_lshl_add_u32 v{dst}, v{tmp}, 3, v{dst}")
        a(f"v_bfe_u32 v{tmp}, v{rho}, 4, 1")
        a(f"v_lshl_add_u32 v{dst}, v{tmp}, 2, v{dst}")
    def woff(dst, pbase_sgpr, cpr, magic, ld, colbase_sgpr):
        a(f"v_add_u32 v3, s{pbase_sgpr}, v1")
        a(f"v_mul_u32_u24 v4, {magic}, v3")
        a("v_lshrrev_b32 v4, 16, v4")
        a(f"v_mul_u32_u24 v5, {cpr}, v4")
        a("v_sub_u32 v5, v3, v5")
        unperm(4, 6, 7)
        a(f"v_mul_u32_u24 v6, {ld}, v6")
        a("v_lshl_add_u32 v6, v5, 4, v6")
        a(f"v_add_u32 v{dst}, s{colbase_sgpr}, v6")
    a(f"s_lshl_b32 s{t0}, s{s_w}, 6")
    a(f"s_lshl_b32 s{t1}, s{s_n1}, 1")
    woff(wo1, t0, 18, 3641, LDW1, t1)
    a("s_waitcnt lgkmcnt(0)")
    stamp(0)
    srd_fin(a, sX, SZ["x"]); srd_fin(a, sW1, SZ["w1"]); srd_fin(a, sWq, SZ["wqkv"])
    for d in xloads(0): a(d)
    a(f"s_cmp_eq_u32 s{s_w}, 0")
    a("s_cbranch_scc0 l1_p2q")
    a(f"s_mov_b32 s{t0}, 512")
    woff(wo2, t0, 18, 3641, LDW1, t1)
    for i in range(4): a(f"s_mov_b32 s{sP2+i}, s{sW1+i}")
    a(f"s_mov_b32 s{stepP2}, {32*LDW1}")
    for q in range(4): a(f"s_mov_b32 s{lp2+q}, {W1R + q*W1S + 8192}")
    a("s_branch l1_p2done")
    a.label("l1_p2q")
    for i in range(4): a(f"s_mov_b32 s{sP2+i}, s{sWq+i}")
    a(f"s_mov_b32 s{stepP2}, {32*LDWQ}")
    a(f"s_sub_u32 s{t0}, s{s_w}, 1")
    a(f"s_lshl_b32 s{t1}, s{t0}, 10")
    for q in range(4): a(f"s_add_u32 s{lp2+q}, s{t1}, {WQR + q*WQS}")
    a(f"s_lshl_b32 s{t0}, s{t0}, 6")
    a(f"s_sub_u32 s{t1}, s{s_mode}, 1")
    a(f"s_mul_i32 s{t1}, s{t1}, 576")
    a(f"s_add_u32 s{t1}, s{t1}, s{s_nq}")
    a(f"s_lshl_b32 s{t1}, s{t1}, 1")
    woff(wo2, t0, 10, 6554, LDWQ, t1)
    a(f"s_cmp_eq_u32 s{s_mode}, 0")
    a("s_cbranch_scc1 l1_p2dummy")
    a(f"s_cmp_le_u32 s{s_w}, 5")
    a("s_cbranch_scc1 l1_p2done")
    a.label("l1_p2dummy")
    a(f"v_mov_b32 v{wo2}, 0x80000000")
    for q in range(4): a(f"s_mov_b32 s{lp2+q}, {PAD}")
    a.label("l1_p2done")
    for d in wloads(0) + wloads(1): a(d)
    srd_fin(a, sGW, SZ["gw"]); srd_fin(a, sB1, SZ["b1"])
    a(f"s_cmp_lt_u32 s{s_w}, 6")
    a("s_cbranch_scc1 l1_nogw")
    a("v_lshlrev_b32 v3, 4, v0")
    a(f"v_subrev_u32 v3, {6*1024}, v3")
    a(f"s_lshl_b32 s{t0}, s{s_w}, 10")
    a(f"s_add_u32 m0, s{t0}, {GWO - 6*1024}")
    a("s_nop 0")
    a(f"buffer_load_dwordx4 v3, s[{sGW}:{sGW+3}], 0 offen lds")
    a.label("l1_nogw")
    a(f"s_cmp_lg_u32 s{s_w}, 5")
    a("s_cbranch_scc1 l1_nobi")
    a("v_lshlrev_b32 v3, 4, v1")
    a(f"s_lshl_b32 s{t0}, s{s_n1}, 1")
    a("v_cmp_lt_u32 vcc, 17, v1")
    a(f"v_add_u32 v3, s{t0}, v3")
    a("v_mov_b32 v4, 0x80000000")
    a("v_cndmask_b32 v3, v3, v4, vcc")
    a(f"s_mov_b32 m0, {BIO}")
    a("s_nop 0")
    a(f"buffer_load_dwordx4 v3, s[{sB1}:{sB1+3}], 0 offen lds")
    a.label("l1_nobi")
    for d in xloads(1) + wloads(2): a(d)
    srd_fin(a, sH, 2048*4608*2, W.H)
    srd_fin(a, sQK, 2*32*2048*48, W.QP); srd_fin(a, sVT, 32*18*4096, W.VT); srd_fin(a, sG, 2048*4, W.G)
    a("v_lshlrev_b32 v3, 2, v0")
    a(f"v_add_u32 v3, {ONE}, v3")
    for i in range(4): a(f"v_mov_b32 v{one+i}, 0x3f803f80")
    a(f"ds_write_b32 v3, v{one}")
    a("v_and_b32 v3, 15, v1")
    a("v_lshrrev_b32 v4, 4, v1")
    a("v_and_b32 v6, 7, v1")
    a("v_xor_b32 v6, v6, v4")
    a("v_lshlrev_b32 v6, 4, v6")
    a("v_lshl_add_u32 v6, v3, 7, v6")
    a(f"s_lshl_b32 s{t0}, s{s_rg}, 13")
    a(f"v_add_u32 v{xr}, s{t0}, v6")
    a(f"v_xor_b32 v{xr+2}, 64, v{xr}")
    a(f"v_add_u32 v{xr+1}, 0x10000, v{xr}")
    a(f"v_add_u32 v{xr+3}, 0x10000, v{xr+2}")
    a("v_lshrrev_b32 v5, 2, v3")
    a("v_lshl_add_u32 v5, v4, 2, v5")
    a("v_and_b32 v6, 3, v1")
    a(f"v_mul_u32_u24 v7, {RS}, v5")
    a("v_lshl_add_u32 v7, v6, 3, v7")
    a(f"v_add_u32 v{w1r}, {W1R}, v7")
    a(f"s_lshl_b32 s{t0}, s{s_w}, 5")
    a(f"v_add_u32 v{dr}, s{t0}, v{w1r}")
    a(f"v_mul_u32_u24 v7, {RQ}, v5")
    a("v_lshl_add_u32 v7, v6, 3, v7")
    a(f"v_add_u32 v{wqr}, {WQR}, v7")
    a("v_cmp_eq_u32 vcc, 1, v3")
    a(f"v_mov_b32 v5, {ONE}")
    a(f"v_mov_b32 v6, {GWO}")
    a("v_cndmask_b32 v5, v5, v6, vcc")
    a(f"v_lshl_add_u32 v{gr}, v4, 4, v5")
    a("s_waitcnt vmcnt(6) lgkmcnt(0)")
    a("s_barrier")
    stamp(1)
    a(f"s_cmp_eq_u32 s{s_ty}, 0")
    a("s_cbranch_scc0 l1_ty1")

    def mainloop(ty, swapped):
        reads = []
        for hs in range(18):
            stg, s = hs >> 1, hs & 1
            sl = stg % 3; q = hs % 4; pb = hs & 1
            for tt in range(4):
                r = xf + pb * 16 + tt * 4
                base = xr + 2 * s + (1 if sl == 2 else 0)
                reads.append((f"ds_read_b128 v[{r}:{r+3}], v{base} offset:{(sl % 2)*XS + tt*2048 if sl < 2 else tt*2048}", ("x", hs)))
            for u in range(NT):
                gu = hs * NT + u
                r = wf + (gu % R) * 4
                for h in range(2):
                    if ty == 0 or u < 2:
                        n = u if ty == 0 else 7 + u
                        reads.append((f"ds_read_b64_tr_b16 v[{r+2*h}:{r+2*h+1}], v{w1r} offset:{q*W1S + 16*h*RS + n*32}", ("w", gu)))
                    else:
                        reads.append((f"ds_read_b64_tr_b16 v[{r+2*h}:{r+2*h+1}], v{wqr} offset:{q*WQS + 16*h*RQ + (u-2)*32}", ("w", gu)))
                if u == 0:
                    reads.append((f"ds_read_b128 v[{gwf+pb*4}:{gwf+pb*4+3}], v{gr} offset:{hs*64}", ("e", hs)))
                    for h in range(2):
                        reads.append((f"ds_read_b64_tr_b16 v[{ded+pb*4+2*h}:{ded+pb*4+2*h+1}], v{dr} offset:{q*W1S + 16*h*RS}", ("e", hs)))
        last = {}
        for i, (_, tg) in enumerate(reads): last[tg] = i
        issued = 0
        def issue(upto):
            nonlocal issued
            while issued < min(upto, len(reads)):
                a(reads[issued][0]); issued += 1
        NU = 18 * NT
        issue(last[("w", DD - 1)] + 1)
        def mfma(c, x, y, first):
            if "nomfma" in EXP: return
            cc = "0" if first else f"v[{c}:{c+3}]"
            a(f"v_mfma_f32_16x16x32_bf16 v[{c}:{c+3}], v[{x}:{x+3}], v[{y}:{y+3}], {cc}")
        for hs in range(18):
            pb = hs & 1
            ld = []
            if hs > 0:
                nprev = (4 if ((hs - 1) % 2 == 0 and ((hs - 1) // 2 + 2) <= 8) else 0) + (2 if hs - 1 + 3 <= 17 else 0)
                a(f"s_waitcnt vmcnt({nprev})")
                a("s_barrier")
                if hs == 9: stamp(2)
            if hs % 2 == 0 and hs // 2 + 2 <= 8: ld += xloads(hs // 2 + 2)
            if hs + 3 <= 17: ld += wloads(hs + 3)
            val = []
            if "nodot" in EXP: val = []
            if "nodma" in EXP: ld = []
            for u in range(NT):
                gu = hs * NT + u
                need = max(last[("w", gu)], last[("x", hs)], last[("e", hs)] if u >= 1 else 0)
                cnt = min(issued - need - 1, 15)
                assert cnt >= 0
                a(f"s_waitcnt lgkmcnt({cnt})")
                w_ = wf + (gu % R) * 4
                sw = swapped and ty == 1 and u >= 2
                for tt in range(4):
                    c = A(u, tt); x_ = xf + pb * 16 + tt * 4
                    if sw: mfma(c, x_, w_, hs == 0)
                    else: mfma(c, w_, x_, hs == 0)
                    if val: a(val.pop(0))
                if u == 1:
                    for i in range(2):
                        mfma(sd + 4 * i, gwf + pb * 4, xf + pb * 16 + (2 * ty + i) * 4, hs == 0)
                    if ty == 1: mfma(cs + 4, w_, one, hs == 0)
                if u == 2:
                    mfma(cs, ded + pb * 4, one, hs == 0)
                if u == 3:
                    for i in range(2):
                        x_ = xf + pb * 16 + (2 * ty + i) * 4
                        mfma(q2 + 4 * i, x_, x_, hs == 0)
                issue(last[("w", min(gu + DD, NU - 1))] + 1)
                if u < len(ld): a(ld[u])
            assert not val
            for d in ld[NT:]: a(d)
        stamp(3)
        T = xf
        a("s_nop 7")
        a("v_and_b32 v3, 3, v1")
        a("v_bfe_u32 v4, v1, 2, 2")
        a("v_lshrrev_b32 v5, 4, v1")
        a("v_cmp_eq_u32 s[92:93], v4, v5")
        for r in range(1, 4):
            a(f"v_cmp_eq_u32 vcc, {r}, v3")
            a("s_nop 1")
            for i in range(2): a(f"v_cndmask_b32 v{q2+4*i}, v{q2+4*i}, v{q2+4*i+r}, vcc")
        a("v_mov_b32 v4, 0")
        a(f"v_cndmask_b32 v{q2}, v4, v{q2}, s[92:93]")
        a(f"v_cndmask_b32 v{q2+1}, v4, v{q2+4}, s[92:93]")
        for perm in ("32", "16"):
            for i in range(2): a(f"v_mov_b32 v{T+i}, v{q2+i}")
            a("s_nop 1")
            for i in range(2): a(f"v_permlane{perm}_swap_b32 v{T+i}, v{q2+i}")
            a("s_nop 1")
            for i in range(2): a(f"v_add_f32 v{q2+i}, v{q2+i}, v{T+i}")
        a("s_nop 3")
        for i in range(2):
            m_ = sd + 4 * i; g_ = m_ + 1
            a(f"v_mul_f32 v{m_}, {f32(1.0/576)}, v{m_}")
            a(f"v_mul_f32 v{T+4}, v{m_}, v{m_}")
            a(f"v_mul_f32 v{T+5}, {f32(1.0/576)}, v{q2+i}")
            a(f"v_sub_f32 v{T+4}, v{T+5}, v{T+4}")
            a(f"v_max_f32 v{T+4}, 0, v{T+4}")
            a(f"v_add_f32 v{T+4}, {f32(1e-5)}, v{T+4}")
            a(f"v_rsq_f32 v{T+2*i}, v{T+4}")
            a(f"v_mul_f32 v{g_}, {f32(-1.4426950408889634)}, v{g_}")
            a(f"v_exp_f32 v{g_}, v{g_}")
            a(f"v_mul_f32 v{T+2*i+1}, v{m_}, v{T+2*i}")
            a(f"v_sub_f32 v{T+2*i+1}, 0, v{T+2*i+1}")
            a(f"v_add_f32 v{g_}, 1.0, v{g_}")
            a(f"v_rcp_f32 v{g_}, v{g_}")
        a("v_and_b32 v3, 15, v1")
        a("v_lshrrev_b32 v4, 4, v1")
        a(f"s_lshl_b32 s{t0}, s{s_rg}, 6")
        a(f"v_add_u32 v5, s{t0}, v3")
        a("v_lshlrev_b32 v6, 3, v5")
        a(f"s_lshl_b32 s{t0}, s{s_w}, 6")
        a(f"v_lshl_add_u32 v7, v4, 4, s{t0}")
        a(f"ds_write_b128 v7, v[{cs}:{cs+3}] offset:{CS}")
        if ty == 1:
            a("v_lshlrev_b32 v7, 4, v4")
            a(f"ds_write_b128 v7, v[{cs+4}:{cs+7}] offset:{CS + 512}")
        a("s_mov_b64 exec, 0xffff")
        for i in range(2):
            a(f"ds_write_b64 v6, v[{T+2*i}:{T+2*i+1}] offset:{STAT + (2*ty+i)*128}")
        a("s_and_b32 s3, s2, 31")
        a(f"s_cbranch_scc1 l1_nog{ty}{int(swapped)}")
        a(f"v_add_u32 v7, s{s_m0}, v5")
        a("v_lshlrev_b32 v7, 2, v7")
        for i in range(2):
            a(f"buffer_store_dword v{sd+4*i+1}, v7, s[{sG}:{sG+3}], 0 offen offset:{(2*ty+i)*64}")
        a.label(f"l1_nog{ty}{int(swapped)}")
        a("s_mov_b64 exec, -1")
        a("s_waitcnt lgkmcnt(0)")
        a("s_barrier")
        stamp(4)
        tiles = list(range(7)) if ty == 0 else [7, 8]
        SR = xf
        CB = xf + 8
        BR = CB + 4 * len(tiles)
        TT_ = (BR + 2 * len(tiles) + 3) // 4 * 4
        assert TT_ + 12 <= xo, (TT_, xo)
        for tt in range(4):
            a(f"ds_read_b64 v[{SR+2*tt}:{SR+2*tt+1}], v6 offset:{STAT + tt*128}")
        a("v_lshlrev_b32 v7, 4, v4")
        a("v_lshlrev_b32 v8, 3, v4")
        a(f"v_add_u32 v8, {BIO}, v8")
        for i, n in enumerate(tiles):
            a(f"ds_read_b128 v[{CB+4*i}:{CB+4*i+3}], v7 offset:{CS + n*64}")
            a(f"ds_read_b64 v[{BR+2*i}:{BR+2*i+1}], v8 offset:{n*32}")
        a(f"v_add_u32 v5, s{s_m0}, v5")
        a("v_mul_u32_u24 v5, 9216, v5")
        a(f"s_lshl_b32 s{t0}, s{s_n1}, 1")
        a(f"v_lshl_add_u32 v6, v4, 3, s{t0}")
        a("v_add_u32 v5, v5, v6")
        a("v_and_b32 v8, 1, v4")
        a(f"v_mul_u32_u24 v9, {16*9216-8}, v8")
        a("v_add_u32 v9, v9, v5")
        a("v_mul_u32_u24 v8, 24, v8")
        a("v_add_u32 v5, v5, v8")
        c1 = -2.0 * 0.7978845608028654 * 1.4426950408889634
        a(f"v_mov_b32 v6, {f32(c1)}"); a(f"v_mov_b32 v7, {f32(c1)}")
        a(f"v_mov_b32 v10, {f32(c1 * 0.044715)}"); a(f"v_mov_b32 v11, {f32(c1 * 0.044715)}")
        a("v_mov_b32 v12, 1.0"); a("v_mov_b32 v13, 1.0")
        a("s_waitcnt lgkmcnt(0)")
        def pr(r): return f"v[{r}:{r+1}]"
        def gelu(i, tts):
            b = TT_
            a(f"v_lshlrev_b32 v{b}, 16, v{BR+2*i}")
            a(f"v_and_b32 v{b+1}, 0xffff0000, v{BR+2*i}")
            a(f"v_lshlrev_b32 v{b+2}, 16, v{BR+2*i+1}")
            a(f"v_and_b32 v{b+3}, 0xffff0000, v{BR+2*i+1}")
            z = [A(i, tt) + 2 * p for tt in tts for p in range(2)]
            t = [TT_ + 4 + 2 * k for k in range(4)]
            sr = [SR + 2 * tt for tt in tts for p in range(2)]
            for k in range(4): a(f"v_pk_fma_f32 {pr(t[k])}, {pr(CB+4*i+2*(k&1))}, {pr(sr[k])}, {pr(b+2*(k&1))} op_sel:[0,1,0] op_sel_hi:[1,1,1]")
            for k in range(4): a(f"v_pk_fma_f32 {pr(z[k])}, {pr(z[k])}, {pr(sr[k])}, {pr(t[k])} op_sel:[0,0,0] op_sel_hi:[1,0,1]")
            for k in range(4): a(f"v_pk_mul_f32 {pr(t[k])}, {pr(z[k])}, {pr(z[k])}")
            for k in range(4): a(f"v_pk_fma_f32 {pr(t[k])}, {pr(t[k])}, v[10:11], v[6:7]")
            for k in range(4): a(f"v_pk_mul_f32 {pr(t[k])}, {pr(t[k])}, {pr(z[k])}")
            for k in range(8): a(f"v_exp_f32 v{TT_+4+k}, v{TT_+4+k}")
            for k in range(4): a(f"v_pk_add_f32 {pr(t[k])}, {pr(t[k])}, v[12:13]")
            for k in range(8): a(f"v_rcp_f32 v{TT_+4+k}, v{TT_+4+k}")
            for k in range(4): a(f"v_pk_mul_f32 {pr(z[k])}, {pr(z[k])}, {pr(t[k])}")
        def pack_store(c, c2, vaddr, soff, off):
            a(f"v_cvt_pk_bf16_f32 v{c}, v{c}, v{c+1}")
            a(f"v_cvt_pk_bf16_f32 v{c+1}, v{c+2}, v{c+3}")
            a(f"v_cvt_pk_bf16_f32 v{c+2}, v{c2}, v{c2+1}")
            a(f"v_cvt_pk_bf16_f32 v{c+3}, v{c2+2}, v{c2+3}")
            a("s_nop 1")
            a(f"v_permlane16_swap_b32 v{c}, v{c+2}")
            a(f"v_permlane16_swap_b32 v{c+1}, v{c+3}")
            a("s_nop 0")
            a(f"buffer_store_dwordx4 v[{c}:{c+3}], v{vaddr}, s[{sH}:{sH+3}], s{soff} offen offset:{off}{SC}")
        def fc1_epi():
            for i in range(0, len(tiles) - 1, 2):
                for tp in ((0, 1), (2, 3)):
                    gelu(i, tp); gelu(i + 1, tp)
                    for tt in tp:
                        pack_store(A(i, tt), A(i + 1, tt), 5, sTT + tt, tiles[i] * 32)
            if len(tiles) % 2:
                i = len(tiles) - 1
                for tp in ((0, 1), (2, 3)):
                    gelu(i, tp)
                    pack_store(A(i, tp[0]), A(i, tp[1]), 9, sTT + tp[0], tiles[i] * 32)
        return fc1_epi
    mainloop(0, False)()
    stamp(5); stamp_out()
    a("s_endpgm")
    a.label("l1_ty1")
    a(f"s_cmp_eq_u32 s{s_mode}, 3")
    a("s_cbranch_scc1 l1_v")
    epi = mainloop(1, False)
    a(f"s_cmp_eq_u32 s{s_mode}, 0")
    a("s_cbranch_scc1 l1_fc1only")
    t_ = [wf + 8 + i for i in range(8)]
    a(f"v_and_b32 v{t_[0]}, 15, v1")
    a(f"v_lshrrev_b32 v{t_[1]}, 4, v1")
    a(f"s_mul_i32 s{t0}, s{s_rg}, 12288")
    a(f"s_add_u32 s{t0}, s{t0}, {STG}")
    a(f"v_mul_u32_u24 v{t_[0]}, 48, v{t_[0]}")
    a(f"v_add_u32 v{t_[0]}, s{t0}, v{t_[0]}")
    a(f"v_lshlrev_b32 v{t_[1]}, 2, v{t_[1]}")
    a(f"s_mov_b32 s{t1}, 1.0")
    a(f"s_cmp_eq_u32 s{s_mode}, 1")
    a(f"s_cselect_b32 s{t1}, {f32(18 ** -0.5 * 1.4426950408889634)}, s{t1}")
    a(f"s_cselect_b32 s{t2}, 0, {32*2048*48}")
    a(f"v_mul_u32_u24 v{t_[2]}, 48, v1")
    a(f"v_add_u32 v{t_[2]}, s{t0}, v{t_[2]}")
    for i in range(3): a(f"v_mov_b32 v{t_[4]+i}, 0")
    for hh in range(4):
        a(f"ds_write_b32 v{t_[2]}, v{t_[4]} offset:{hh*3072 + 36}")
        a(f"ds_write_b64 v{t_[2]}, v[{t_[4]}:{t_[4]+1}] offset:{hh*3072 + 40}")
    for j in range(5):
        for p in range(2):
            a(f"v_add_u32 v{t_[3]}, {16*j + 2*p}, v{t_[1]}")
            a(f"v_mul_u32_u24 v14, 3641, v{t_[3]}")
            a("v_lshrrev_b32 v14, 16, v14")
            a("v_mul_u32_u24 v15, 18, v14")
            a(f"v_sub_u32 v15, v{t_[3]}, v15")
            a("v_mul_u32_u24 v14, 3072, v14")
            a("v_lshl_add_u32 v14, v15, 1, v14")
            a(f"v_add_u32 v14, v14, v{t_[0]}")
            if j == 4:
                a(f"v_cmp_lt_u32 vcc, 71, v{t_[3]}")
                a(f"v_mov_b32 v15, {PAD}")
                a("s_nop 0")
                a("v_cndmask_b32 v14, v14, v15, vcc")
            for tt in range(4):
                c = A(2 + j, tt) + 2 * p
                a(f"v_mul_f32 v{c}, s{t1}, v{c}")
                a(f"v_mul_f32 v{c+1}, s{t1}, v{c+1}")
                a(f"v_cvt_pk_bf16_f32 v{c}, v{c}, v{c+1}")
                a(f"ds_write_b32 v14, v{c} offset:{tt*768}")
    a(f"v_lshlrev_b32 v14, 4, v1")
    a(f"v_add_u32 v15, s{t0}, v14")
    a(f"s_and_b32 s{t3}, s2, 7")
    a(f"s_mul_i32 s{t3}, s{t3}, {4*98304}")
    a(f"s_add_u32 s{t2}, s{t2}, s{t3}")
    a(f"s_lshl_b32 s{t3}, s{s_rg}, 6")
    a(f"s_add_u32 s{t3}, s{t3}, s{s_m0}")
    a(f"s_mul_i32 s{t3}, s{t3}, 48")
    a(f"s_add_u32 s{t2}, s{t2}, s{t3}")
    a(f"v_add_u32 v14, s{t2}, v14")
    a("s_waitcnt lgkmcnt(0)")
    QR = A(2, 0)
    for i in range(12):
        a(f"ds_read_b128 v[{QR+4*i}:{QR+4*i+3}], v15 offset:{i*1024}")
    for i in range(12):
        a(f"s_waitcnt lgkmcnt({11-i})")
        a(f"s_mov_b32 s{t3}, {(i//3)*98304}")
        a(f"buffer_store_dwordx4 v[{QR+4*i}:{QR+4*i+3}], v14, s[{sQK}:{sQK+3}], s{t3} offen offset:{(i%3)*1024}")
    a.label("l1_fc1only")
    epi()
    stamp(5); stamp_out()
    a("s_endpgm")
    a.label("l1_v")
    epi = mainloop(1, True)
    a("v_and_b32 v14, 15, v1")
    a("v_lshrrev_b32 v3, 4, v1")
    a("v_cmp_lt_u32 vcc, 7, v14")
    a(f"v_add_u32 v14, s{s_nq}, v14")
    a("v_lshlrev_b32 v14, 12, v14")
    a("v_and_b32 v4, 1, v3")
    a("v_lshlrev_b32 v4, 3, v4")
    a("v_lshrrev_b32 v3, 1, v3")
    a("v_lshl_add_u32 v4, v3, 4, v4")
    a(f"s_lshl_b32 s{t0}, s{s_rg}, 6")
    a(f"s_add_u32 s{t0}, s{t0}, s{s_m0}")
    a(f"v_add_u32 v4, s{t0}, v4")
    a("v_lshl_add_u32 v14, v4, 1, v14")
    a("v_mov_b32 v15, 0x80000000")
    a("v_cndmask_b32 v15, v14, v15, vcc")
    for j in range(5):
        for tp in (0, 2):
            c = A(2 + j, tp); c2 = A(2 + j, tp + 1)
            a(f"v_cvt_pk_bf16_f32 v{c}, v{c}, v{c+1}")
            a(f"v_cvt_pk_bf16_f32 v{c+1}, v{c+2}, v{c+3}")
            a(f"v_cvt_pk_bf16_f32 v{c+2}, v{c2}, v{c2+1}")
            a(f"v_cvt_pk_bf16_f32 v{c+3}, v{c2+2}, v{c2+3}")
            a("s_nop 1")
            a(f"v_permlane32_swap_b32 v{c}, v{c+2}")
            a(f"v_permlane32_swap_b32 v{c+1}, v{c+3}")
            a(f"s_mov_b32 s{t3}, {j*0x10000}")
            a(f"buffer_store_dwordx4 v[{c}:{c+3}], v{15 if j == 4 else 14}, s[{sVT}:{sVT+3}], s{t3} offen offset:{tp*32}")
    epi()
    stamp(5); stamp_out()
    a.label("l1_done")
    a("s_endpgm")
    return a.text(), NV, L1_LDS

def main():
    g1, g1_v, g1_l = gen_l1()
    at, at_v, at_l = G2.gen_attn()
    f2, f2_v, f2_l = G2.gen_fc2()
    fn, fn_v, fn_l = G2.gen_fin()
    ks = [("l1_kernel", g1, g1_v, g1_l, 256, 512),
          ("attn_kernel", at, at_v, at_l, 256, 512), ("fc2_kernel", f2, f2_v, f2_l, 256, 256),
          ("fin_kernel", fn, fn_v, fn_l, 256, 128)]
    o = "; gated_mix: softmax MHA + mixer channel MLP, generated by dev/gen5.py\n"
    for n, _, _, l, gr, bl in ks:
        o += f"; @launch kernel={n} grid=({gr},1,1) block=({bl},1,1) lds={l}\n"
    o += '.amdgcn_target "amdgcn-amd-amdhsa--gfx950"\n.text\n'
    for n, t, *_ in ks:
        o += kernel_header(n) + t
    o += '.section .rodata,"a"\n'
    for n, _, v, *_ in ks:
        o += kernel_desc(n, v)
    path = sys.argv[1] if len(sys.argv) > 1 else "gated_mix__softmax_full_mha__mixer_channel_mlp__prompt.s"
    open(path, "w").write(o)
    print("wrote", path, len(o), "bytes; vgprs", [(k[0], k[2], k[3]) for k in ks])

if __name__ == '__main__':
    main()
```

```python
import sys, os
import wsmap as W
from gen import Asm, f32, srd_load, srd_fin, kernel_header, kernel_desc, KA, SZ, EXP, SC
import gen as G2
import gen5 as G5

KB = 24576; VOFF = KB; DLT = KB + 19 * 1024
FR = 2 * DLT
STG = 18432
AF_LDS = FR + 4 * STG + 2048
B1, B2 = 5, 12
PRIO = os.environ.get("PRIO", "")

def gen_af():
    a = Asm()
    a("s_cmp_ge_u32 s2, 256")
    a("s_cbranch_scc1 at_done")
    a("v_lshrrev_b32 v2, 6, v0")
    a("s_nop 0")
    a("v_readfirstlane_b32 s26, v2")
    cnt_ = [0]
    def stampd(vt):
        if "stamp" not in EXP: return
        cnt_[0] += 1
        lbl = f"af_ns{cnt_[0]}"
        a("s_cmp_eq_u32 s63, 0")
        a(f"s_cbranch_scc1 {lbl}")
        a("s_memtime s[60:61]")
        a("s_waitcnt lgkmcnt(0)")
        a(f"v_mov_b32 v{vt}, s60")
        a("s_mov_b64 s[68:69], exec")
        a("s_mov_b64 exec, 1")
        a(f"buffer_store_dword v{vt}, off, s[64:67], s62")
        a("s_mov_b64 exec, s[68:69]")
        a("s_add_u32 s62, s62, 4")
        a.label(lbl)
    if "stamp" in EXP:
        a("s_load_dwordx2 s[64:65], s[0:1], 80")
        a("s_waitcnt lgkmcnt(0)")
        a("s_mov_b32 s66, 256"); a("s_mov_b32 s67, 0x20000")
        a("s_and_b32 s62, s26, 7")
        a("s_cmp_eq_u32 s62, 0")
        a("s_cselect_b32 s63, 1, 0")
        a("s_cmp_eq_u32 s2, 5")
        a("s_cselect_b32 s63, s63, 0")
        a("s_cmp_lg_u32 s2, 5")
        a("s_cbranch_scc1 af_nohw")
        a("s_getreg_b32 s60, hwreg(HW_REG_HW_ID)")
        a("s_lshl_b32 s62, s26, 2")
        a("s_add_u32 s62, s62, 208")
        a("v_mov_b32 v3, s60")
        a("s_mov_b64 exec, 1")
        a("buffer_store_dword v3, off, s[64:67], s62")
        a("s_mov_b64 exec, -1")
        a.label("af_nohw")
        a("s_lshl_b32 s62, s26, 4")
    a("s_cmp_ge_u32 s26, 8")
    a("s_cbranch_scc1 f2_start")
    stampd(155)
    sK, sV, sQ, sOo = 4, 8, 12, 16
    s_h, s_q0, s_w, s_koff, s_voff, s_mk, s_mv, s_c, s_thr = 24, 25, 26, 27, 28, 29, 30, 31, 32
    s_dK, s_dV, s_dD = 37, 38, 39
    S = [16, 32]; NM = 48; O = 64; Q0 = 80; Q1 = 84; PP = [88, 96]
    KF = [104, 112]; VFF = [120, 128]
    vK0, vK1 = 136, 137; vV = 138
    dK = 146; dV = 147
    t0, t1, t2, t3 = 150, 151, 152, 153
    vmx = 154
    P = PP[0]
    srd_load(a, sK, "ws"); srd_load(a, sV, "ws"); srd_load(a, sQ, "ws"); srd_load(a, sOo, "ws")
    a(f"s_and_b32 s{s_h}, s2, 31")
    a(f"s_lshr_b32 s{s_q0}, s2, 5")
    a(f"s_lshl_b32 s{s_q0}, s{s_q0}, 8")
    a("v_and_b32 v1, 63, v0")
    a("v_and_b32 v2, 31, v1")
    a("v_lshrrev_b32 v3, 5, v1")
    for s_ in (s_dK, s_dV, s_dD): a(f"s_mov_b32 s{s_}, {DLT}")
    a("s_waitcnt lgkmcnt(0)")
    srd_fin(a, sK, 32*2048*48, W.KP); srd_fin(a, sV, 32*18*4096, W.VT); srd_fin(a, sQ, 32*2048*48, W.QP); srd_fin(a, sOo, 2048*576*2, W.O)
    a(f"s_lshl_b32 s{s_c}, s{s_h}, 11")
    a(f"s_add_u32 s{s_c}, s{s_c}, s{s_q0}")
    a(f"s_lshl_b32 s33, s{s_w}, 5")
    a(f"s_add_u32 s{s_c}, s{s_c}, s33")
    a(f"v_add_u32 v4, s{s_c}, v2")
    a("v_mul_u32_u24 v4, 48, v4")
    a("v_lshl_add_u32 v5, v3, 4, v4")
    a(f"buffer_load_dwordx4 v[{Q0}:{Q0+3}], v5, s[{sQ}:{sQ+3}], 0 offen")
    a(f"buffer_load_dwordx4 v[{Q1}:{Q1+3}], v4, s[{sQ}:{sQ+3}], 0 offen offset:32")
    a(f"s_mul_i32 s33, s{s_w}, 3072")
    a(f"v_lshlrev_b32 v{dK}, 4, v1")
    a(f"v_add_u32 v{dK}, s33, v{dK}")
    a(f"s_mul_i32 s{s_koff}, s{s_h}, 98304")
    a(f"s_mov_b32 s{s_voff}, 0")
    a(f"s_mul_i32 s34, s{s_h}, 18")
    for i in range(3):
        if i < 2:
            a(f"s_lshl_b32 s35, s{s_w}, 1")
            if i: a("s_add_u32 s35, s35, 1")
        else:
            a(f"s_add_u32 s35, s{s_w}, 16")
        a("s_and_b32 s36, s35, 15")
        a(f"v_xor_b32 v4, s36, v1")
        a("v_lshlrev_b32 v4, 4, v4")
        a("s_add_u32 s36, s35, s34")
        a("s_lshl_b32 s36, s36, 12")
        a(f"v_add_u32 v{dV+i}, s36, v4")
    a(f"s_mul_i32 s{s_mk}, s{s_w}, 3072")
    a(f"s_lshl_b32 s{s_mv}, s{s_w}, 11")
    a(f"s_add_u32 s{s_mv}, s{s_mv}, {VOFF}")
    def dma(toggle):
        a(f"s_mov_b32 m0, s{s_mk}")
        a("s_nop 0")
        for i in range(3):
            a(f"buffer_load_dwordx4 v{dK}, s[{sK}:{sK+3}], s{s_koff} offen offset:{i*1024} lds")
        a(f"s_mov_b32 m0, s{s_mv}")
        a("s_nop 0")
        a(f"buffer_load_dwordx4 v{dV}, s[{sV}:{sV+3}], s{s_voff} offen lds")
        a(f"s_add_u32 m0, s{s_mv}, 1024")
        a("s_nop 0")
        a(f"buffer_load_dwordx4 v{dV+1}, s[{sV}:{sV+3}], s{s_voff} offen lds")
        a(f"s_cmp_ge_u32 s{s_w}, 2")
        a(f"s_cbranch_scc1 at_dskip{toggle}")
        a(f"s_lshl_b32 s33, s{s_w}, 10")
        a(f"s_sub_u32 s33, s{s_mv}, s33")
        a(f"s_add_u32 m0, s33, {16*1024}")
        a("s_nop 0")
        a(f"buffer_load_dwordx4 v{dV+2}, s[{sV}:{sV+3}], s{s_voff} offen lds")
        a.label(f"at_dskip{toggle}")
        a(f"s_add_u32 s{s_koff}, s{s_koff}, {KB}")
        a(f"s_add_u32 s{s_voff}, s{s_voff}, 1024")
        a(f"s_add_u32 s{s_mk}, s{s_mk}, s{s_dD}")
        a(f"s_add_u32 s{s_mv}, s{s_mv}, s{s_dD}")
        a(f"s_sub_u32 s{s_dD}, 0, s{s_dD}")
    dma("a")
    dma("b")
    a("v_lshlrev_b32 v4, 2, v0")
    a("v_and_b32 v5, 1023, v4")
    a("v_lshrrev_b32 v6, 10, v4")
    a(f"v_mul_u32_u24 v6, {DLT}, v6")
    a("v_add_u32 v5, v5, v6")
    a(f"v_add_u32 v5, {VOFF + 18*1024}, v5")
    a("v_mov_b32 v6, 0x3f803f80")
    a("ds_write_b32 v5, v6")
    a(f"v_mul_u32_u24 v{vK1}, 48, v2")
    a(f"v_lshl_add_u32 v{vK0}, v3, 4, v{vK1}")
    a(f"v_add_u32 v{vK1}, 32, v{vK1}")
    a("v_min_u32 v4, 18, v2")
    a("v_and_b32 v5, 15, v4")
    a("v_lshlrev_b32 v4, 10, v4")
    a(f"v_add_u32 v4, {VOFF}, v4")
    for i in range(8):
        a(f"v_add_u32 v6, {2*i}, v3")
        a("v_xor_b32 v6, v6, v5")
        a(f"v_lshl_add_u32 v{vV+i}, v6, 4, v4")
    for r in range(16):
        a(f"v_mov_b32 v{NM+r}, 0")
        a(f"v_mov_b32 v{O+r}, 0")
        a(f"v_mov_b32 v{PP[0]+r}, 0")
        a(f"v_mov_b32 v{VFF[0]+r}, 0")
    a(f"s_mov_b32 s{s_thr}, {f32(10.0)}")
    a("s_waitcnt vmcnt(5) lgkmcnt(0)")
    a("v_cmp_lt_u32 vcc, 31, v1")
    a("v_mov_b32 v4, 0")
    a("s_nop 1")
    for r in range(4):
        a(f"v_cndmask_b32 v{Q1+r}, v{Q1+r}, v4, vcc")
    stampd(155)
    a("s_barrier")
    stampd(155)
    def kread(tile, kf):
        a(f"ds_read_b128 v[{kf}:{kf+3}], v{vK0} offset:{tile*1536}")
        a(f"ds_read_b128 v[{kf+4}:{kf+7}], v{vK1} offset:{tile*1536}")
    def qk(kf, s):
        a(f"v_mfma_f32_32x32x16_bf16 v[{s}:{s+15}], v[{kf}:{kf+3}], v[{Q0}:{Q0+3}], v[{NM}:{NM+15}]")
        a(f"v_mfma_f32_32x32x16_bf16 v[{s}:{s+15}], v[{kf+4}:{kf+7}], v[{Q1}:{Q1+3}], v[{s}:{s+15}]")
    def maxtree(s):
        a(f"v_max3_f32 v{t0}, v{s}, v{s+1}, v{s+2}")
        a(f"v_max3_f32 v{t1}, v{s+3}, v{s+4}, v{s+5}")
        a(f"v_max3_f32 v{t2}, v{s+6}, v{s+7}, v{s+8}")
        a(f"v_max3_f32 v{t3}, v{s+9}, v{s+10}, v{s+11}")
        a(f"v_max3_f32 v{t0}, v{t0}, v{s+12}, v{s+13}")
        a(f"v_max3_f32 v{t1}, v{t1}, v{s+14}, v{s+15}")
        a(f"v_max3_f32 v{t0}, v{t0}, v{t1}, v{t2}")
        a(f"v_max_f32 v{vmx}, v{t0}, v{t3}")
    def xhalf_max():
        a(f"v_mov_b32 v{t0}, v{vmx}")
        a("s_nop 1")
        a(f"v_permlane32_swap_b32 v{t0}, v{vmx}")
        a("s_nop 1")
        a(f"v_max_f32 v{vmx}, v{vmx}, v{t0}")
    kread(0, KF[0]); kread(1, KF[1])
    a("s_waitcnt lgkmcnt(2)")
    qk(KF[0], S[0])
    a("s_nop 15"); a("s_nop 3")
    maxtree(S[0])
    xhalf_max()
    a(f"v_sub_f32 v{t0}, 0, v{vmx}")
    for r in range(16):
        a(f"v_mov_b32 v{NM+r}, v{t0}")
    a("s_nop 1")
    qk(KF[0], S[0])
    a("s_nop 15")
    a(f"s_mov_b32 s{s_c}, 0")
    a.label("at_chunk")
    def pv(j, vf, p):
        a(f"v_mfma_f32_32x32x16_bf16 v[{O}:{O+15}], v[{vf+4*j}:{vf+4*j+3}], v[{p+4*j}:{p+4*j+3}], v[{O}:{O+15}]")
    for t in range(16):
        cur, nxt = S[t & 1], S[(t + 1) & 1]
        Pc, Pp = PP[t & 1], PP[(t + 1) & 1]
        Vc, Vp = VFF[t & 1], VFF[(t + 1) & 1]
        if t == B2:
            a("s_waitcnt vmcnt(0)")
            stampd(155)
            a("s_barrier")
            stampd(155)
        if t == 14:
            a(f"v_add_u32 v{vK0}, s{s_dK}, v{vK0}")
            a(f"v_add_u32 v{vK1}, s{s_dK}, v{vK1}")
            a(f"s_sub_u32 s{s_dK}, 0, s{s_dK}")
        if t == B1:
            stampd(155)
            a("s_barrier")
            stampd(155)
            a(f"s_cmp_eq_u32 s{s_c}, 0")
            a("s_cbranch_scc1 at_nb1")
            a(f"s_cmp_eq_u32 s{s_c}, 3")
            a("s_cbranch_scc1 at_nb1")
            dma("c")
            a.label("at_nb1")
        i0_ = (t & 3) * 2
        a(f"ds_read_b128 v[{Vc}:{Vc+3}], v{vV+i0_} offset:{(t>>2)*256}")
        a(f"ds_read_b128 v[{Vc+4}:{Vc+7}], v{vV+i0_+1} offset:{(t>>2)*256}")
        kread((t + 2) & 15, KF[t & 1])
        maxtree(cur)
        a(f"v_cmp_lt_f32 vcc, s{s_thr}, v{vmx}")
        a(f"s_cbranch_vccnz at_slow{t}")
        a.label(f"at_back{t}")
        a("s_waitcnt lgkmcnt(4)")
        kf = KF[(t + 1) & 1]
        def exps(r0):
            for r in range(r0, r0 + 4):
                a(f"v_exp_f32 v{cur+r}, v{cur+r}")
        pv(0, Vp, Pp)
        exps(0)
        a(f"v_mfma_f32_32x32x16_bf16 v[{nxt}:{nxt+15}], v[{kf}:{kf+3}], v[{Q0}:{Q0+3}], v[{NM}:{NM+15}]")
        exps(4)
        pv(1, Vp, Pp)
        a(f"v_cvt_pk_bf16_f32 v{Pc}, v{cur}, v{cur+1}")
        a(f"v_cvt_pk_bf16_f32 v{Pc+1}, v{cur+2}, v{cur+3}")
        exps(8)
        a(f"v_mfma_f32_32x32x16_bf16 v[{nxt}:{nxt+15}], v[{kf+4}:{kf+7}], v[{Q1}:{Q1+3}], v[{nxt}:{nxt+15}]")
        a(f"v_cvt_pk_bf16_f32 v{Pc+2}, v{cur+4}, v{cur+5}")
        a(f"v_cvt_pk_bf16_f32 v{Pc+3}, v{cur+6}, v{cur+7}")
        exps(12)
        for r in range(4, 8):
            a(f"v_cvt_pk_bf16_f32 v{Pc+r}, v{cur+2*r}, v{cur+2*r+1}")
        a("s_nop 1")
        L = a.late
        L.append(f"at_slow{t}:")
        def l(s_): L.append("    " + s_)
        l("s_waitcnt lgkmcnt(0)")
        l(f"v_mfma_f32_32x32x16_bf16 v[{O}:{O+15}], v[{Vp}:{Vp+3}], v[{Pp}:{Pp+3}], v[{O}:{O+15}]")
        l(f"v_mfma_f32_32x32x16_bf16 v[{O}:{O+15}], v[{Vp+4}:{Vp+7}], v[{Pp+4}:{Pp+7}], v[{O}:{O+15}]")
        l(f"v_mov_b32 v{t0}, v{vmx}")
        l("s_nop 1")
        l(f"v_permlane32_swap_b32 v{t0}, v{vmx}")
        l("s_nop 1")
        l(f"v_max_f32 v{vmx}, v{vmx}, v{t0}")
        l(f"v_max_f32 v{vmx}, 0, v{vmx}")
        l(f"v_sub_f32 v{t1}, 0, v{vmx}")
        l(f"v_exp_f32 v{t1}, v{t1}")
        l("s_nop 15"); l("s_nop 15")
        for r in range(8):
            l(f"v_mov_b32 v{Pp+r}, 0")
        for r in range(16):
            l(f"v_sub_f32 v{cur+r}, v{cur+r}, v{vmx}")
            l(f"v_sub_f32 v{NM+r}, v{NM+r}, v{vmx}")
            l(f"v_mul_f32 v{O+r}, v{O+r}, v{t1}")
        l("s_nop 1")
        l(f"s_branch at_back{t}")
    for i in range(8):
        a(f"v_add_u32 v{vV+i}, s{s_dV}, v{vV+i}")
    a(f"s_sub_u32 s{s_dV}, 0, s{s_dV}")
    a(f"s_add_u32 s{s_c}, s{s_c}, 1")
    a(f"s_cmp_lt_u32 s{s_c}, 4")
    a("s_cbranch_scc1 at_chunk")
    a("s_waitcnt lgkmcnt(0)")
    pv(0, VFF[1], PP[1])
    pv(1, VFF[1], PP[1])
    a("s_nop 15"); a("s_nop 3")
    a(f"v_rcp_f32 v{t0}, v{O+10}")
    a("s_nop 1")
    a(f"v_mov_b32 v{t1}, v{t0}")
    a("s_nop 1")
    a(f"v_permlane32_swap_b32 v{t1}, v{t0}")
    a("s_nop 1")
    for r in range(10):
        a(f"v_mul_f32 v{O+r}, v{O+r}, v{t1}")
    for r in range(5):
        a(f"v_cvt_pk_bf16_f32 v{P+r}, v{O+2*r}, v{O+2*r+1}")
    a(f"s_lshl_b32 s33, s{s_w}, 5")
    a(f"s_add_u32 s33, s33, s{s_q0}")
    a("v_and_b32 v2, 31, v0")
    a("v_bfe_u32 v3, v0, 5, 1")
    a("v_add_u32 v4, s33, v2")
    a("v_mul_u32_u24 v4, 1152, v4")
    a(f"s_mul_i32 s33, s{s_h}, 36")
    a("v_lshl_add_u32 v4, v3, 3, v4")
    a("v_add_u32 v4, s33, v4")
    a(f"buffer_store_dwordx2 v[{P}:{P+1}], v4, s[{sOo}:{sOo+3}], 0 offen")
    a(f"buffer_store_dwordx2 v[{P+2}:{P+3}], v4, s[{sOo}:{sOo+3}], 0 offen offset:16")
    a("s_mov_b64 exec, 0xffffffff")
    a(f"buffer_store_dword v{P+4}, v4, s[{sOo}:{sOo+3}], 0 offen offset:32")
    a("s_mov_b64 exec, -1")
    stampd(155)
    a.label("at_done")
    a("s_endpgm")
    a.label("f2_start")
    if PRIO: a(f"s_setprio {PRIO}")
    stampd(9)
    sA, sW, sO = 4, 8, 12
    s_m0, s_n0, s_sp, offA, offW, s_wv, s_lw, u0, u1 = range(24, 33)
    D = 4; R = D + 2
    acc = 12; wf = acc + 72; xf = wf + R * 4; xo = xf + 48; wo = xo + 2; wr = wo + 5
    NVF = wr + 2
    assert NVF <= 168, NVF
    def A(n, tt): return acc + (n * 2 + tt) * 4
    def X(st, s, tt): return xf + (((st % 3) * 2 + s) * 2 + tt) * 4
    srd_load(a, sA, "ws"); srd_load(a, sW, "w2"); srd_load(a, sO, "ws")
    a(f"s_sub_u32 s{s_wv}, s26, 8")
    a(f"s_and_b32 s{s_sp}, s2, 3")
    a(f"s_bfe_u32 s{s_m0}, s2, 0x10002")
    a(f"s_lshl_b32 s{s_m0}, s{s_m0}, 3")
    a(f"s_lshr_b32 s{u0}, s2, 5")
    a(f"s_add_u32 s{s_m0}, s{s_m0}, s{u0}")
    a(f"s_lshl_b32 s{s_m0}, s{s_m0}, 7")
    a(f"s_bfe_u32 s{s_n0}, s2, 0x20003")
    a(f"s_mul_i32 s{s_n0}, s{s_n0}, 144")
    a(f"s_mul_i32 s{offA}, s{s_sp}, {1152*2}")
    a(f"s_mul_i32 s{offW}, s{s_sp}, {1152*1152}")
    a("v_and_b32 v1, 63, v0")
    a("v_and_b32 v3, 15, v1")
    a("v_lshrrev_b32 v4, 4, v1")
    a(f"s_lshl_b32 s{u0}, s{s_wv}, 5")
    a(f"s_add_u32 s{u0}, s{u0}, s{s_m0}")
    a(f"v_add_u32 v5, s{u0}, v3")
    a("v_mul_u32_u24 v5, 9216, v5")
    a(f"v_lshl_add_u32 v{xo}, v4, 4, v5")
    a(f"v_add_u32 v{xo+1}, {16*9216}, v{xo}")
    a("v_lshrrev_b32 v5, 2, v3")
    a("v_lshl_add_u32 v5, v4, 2, v5")
    a("v_mul_u32_u24 v5, 288, v5")
    a("v_and_b32 v6, 3, v1")
    a("v_lshl_add_u32 v5, v6, 3, v5")
    a(f"v_add_u32 v{wr}, {FR}, v5")
    a(f"v_add_u32 v{wr+1}, {FR + 2*STG}, v5")
    a(f"s_mul_i32 s{u0}, s{s_wv}, 320")
    a(f"s_lshl_b32 s{u1}, s{s_n0}, 1")
    for i in range(5):
        a(f"v_add_u32 v3, s{u0}, v1")
        if i: a(f"v_add_u32 v3, {i*64}, v3")
        a("v_mul_u32_u24 v4, 3641, v3")
        a("v_lshrrev_b32 v4, 16, v4")
        a("v_mul_u32_u24 v5, 18, v4")
        a("v_sub_u32 v5, v3, v5")
        a("v_and_b32 v6, 32, v4")
        a("v_and_b32 v7, 3, v4")
        a("v_add_u32 v6, v6, v7")
        a("v_bfe_u32 v7, v4, 2, 2")
        a("v_lshl_add_u32 v6, v7, 3, v6")
        a("v_bfe_u32 v7, v4, 4, 1")
        a("v_lshl_add_u32 v6, v7, 2, v6")
        a("v_mul_u32_u24 v6, 1152, v6")
        a("v_lshl_add_u32 v6, v5, 4, v6")
        a(f"v_add_u32 v{wo+i}, s{u1}, v6")
        if i >= 3:
            a("v_mov_b32 v7, 0x80000000")
            a("v_cmp_le_u32 vcc, 1152, v3")
            a("s_nop 1")
            a(f"v_cndmask_b32 v{wo+i}, v{wo+i}, v7, vcc")
    a(f"s_mul_i32 s{s_lw}, s{s_wv}, 5120")
    a("s_waitcnt lgkmcnt(0)")
    srd_fin(a, sA, 2048*4608*2, W.H); srd_fin(a, sW, SZ["w2"]); srd_fin(a, sO, 4*2048*576*4, W.P)
    def xl(st):
        out = []
        for tt in range(2):
            out.append("\n".join(f"buffer_load_dwordx4 v[{X(st,s,tt)}:{X(st,s,tt)+3}], v{xo+tt}, s[{sA}:{sA+3}], s{offA} offen offset:{s*64}" for s in range(2)))
        out[-1] += f"\ns_add_u32 s{offA}, s{offA}, 128"
        return out
    def wl(st):
        out = []
        q = st % 4
        for i in range(5):
            if i >= 3:
                out.append(f"s_add_u32 s{u0}, s{s_lw}, {i*1024}\ns_cmp_ge_u32 s{u0}, {STG}\n"
                           f"s_cselect_b32 s{u1}, {(3-q)*STG}, 0\ns_add_u32 s{u0}, s{u0}, s{u1}\n"
                           f"s_add_u32 m0, s{u0}, {FR + q*STG}\ns_nop 0\nbuffer_load_dwordx4 v{wo+i}, s[{sW}:{sW+3}], s{offW} offen lds")
            else:
                out.append(f"s_add_u32 m0, s{s_lw}, {FR + q*STG + i*1024}\ns_nop 0\nbuffer_load_dwordx4 v{wo+i}, s[{sW}:{sW+3}], s{offW} offen lds")
        out[-1] += f"\ns_add_u32 s{offW}, s{offW}, {64*1152}"
        return out
    NST = 18
    for d in wl(0) + wl(1) + xl(0) + xl(1): a(d)
    reads = []
    for st in range(NST):
        for u in range(18):
            s, n = divmod(u, 9)
            r = wf + ((st * 18 + u) % R) * 4
            for h in range(2):
                reads.append(f"ds_read_b64_tr_b16 v[{r+2*h}:{r+2*h+1}], v{wr + (st % 4)//2} offset:{(st % 2)*STG + (32*s+16*h)*288 + n*32}")
    issued = 0
    def issue(upto):
        nonlocal issued
        while issued < min(upto, len(reads)):
            a(reads[issued]); issued += 1
    for st in range(NST):
        ld = []
        if st % 2 == 0:
            a(f"s_waitcnt vmcnt({4 if st + 1 < NST else 0})")
            stampd(9)
            a("s_barrier")
            stampd(9)
            if st + 2 < NST: ld += wl(st + 2) + wl(st + 3)
            if st + 2 < NST: ld = ld[:2] + xl(st + 2) + ld[2:]
            issue(2 * (st * 18 + D))
        else:
            a(f"s_waitcnt vmcnt({14 if st + 1 < NST else 0})")
            if st + 2 < NST: ld += xl(st + 2)
        for u in range(18):
            s, n = divmod(u, 9)
            gu = st * 18 + u
            cnt = issued - (2 * gu + 2)
            assert 0 <= cnt <= 15
            a(f"s_waitcnt lgkmcnt({cnt})")
            w_ = wf + (gu % R) * 4
            for tt in range(2):
                c = A(n, tt); x_ = X(st, s, tt)
                cc = "0" if (st == 0 and s == 0) else f"v[{c}:{c+3}]"
                a(f"v_mfma_f32_16x16x32_bf16 v[{c}:{c+3}], v[{w_}:{w_+3}], v[{x_}:{x_+3}], {cc}")
            lim = (st | 1) * 18 + 18
            issue(2 * min(gu + D + 1, lim))
            if u < len(ld): a(ld[u])
    a("s_nop 7"); a("s_nop 1")
    a("v_and_b32 v2, 15, v1")
    a("v_lshrrev_b32 v3, 4, v1")
    a(f"s_lshl_b32 s{u0}, s{s_wv}, 5")
    a(f"s_add_u32 s{u0}, s{u0}, s{s_m0}")
    a(f"s_lshl_b32 s{u1}, s{s_sp}, 11")
    a(f"s_add_u32 s{u0}, s{u0}, s{u1}")
    a(f"v_add_u32 v2, s{u0}, v2")
    a("v_mul_u32_u24 v4, 2304, v2")
    a(f"s_lshl_b32 s{u0}, s{s_n0}, 2")
    a(f"v_lshl_add_u32 v5, v3, 4, s{u0}")
    a("v_add_u32 v4, v4, v5")
    a(f"v_add_u32 v5, {16*2304}, v4")
    for n in range(9):
        for tt in range(2):
            c = A(n, tt)
            a(f"buffer_store_dwordx4 v[{c}:{c+3}], v{4+tt}, s[{sO}:{sO+3}], 0 offen offset:{n*64}{SC}")
    stampd(9)
    a("s_endpgm")
    return a.text() + "\n".join(a.late) + "\n", 168, AF_LDS

def main():
    g1, g1_v, g1_l = G5.gen_l1()
    af, af_v, af_l = gen_af()
    fn, fn_v, fn_l = G2.gen_fin()
    ks = [("l1_kernel", g1, g1_v, g1_l, 256, 512), ("af_kernel", af, af_v, af_l, 256, 768),
          ("fin_kernel", fn, fn_v, fn_l, 256, 128)]
    o = "; gated_mix: softmax MHA + mixer channel MLP, generated by dev/gen6.py\n"
    for n, _, _, l, gr, bl in ks:
        o += f"; @launch kernel={n} grid=({gr},1,1) block=({bl},1,1) lds={l}\n"
    o += '.amdgcn_target "amdgcn-amd-amdhsa--gfx950"\n.text\n'
    for n, t, *_ in ks:
        o += kernel_header(n) + t
    o += '.section .rodata,"a"\n'
    for n, _, v, *_ in ks:
        o += kernel_desc(n, v)
    path = sys.argv[1] if len(sys.argv) > 1 else "gated_mix__softmax_full_mha__mixer_channel_mlp__prompt.s"
    open(path, "w").write(o)
    print("wrote", path, len(o), "bytes; vgprs", [(k[0], k[2], k[3]) for k in ks])

if __name__ == '__main__':
    main()
```
